```python
import torch

def _softmax(x, axis=-1):
    return torch.softmax(x, dim=axis)
def _gelu(x):
    return torch.nn.functional.gelu(x, approximate="tanh")
def _silu(x):
    return torch.nn.functional.silu(x)
def _sigmoid(x):
    return torch.sigmoid(x)
def _layernorm(x, axis=-1, eps=1e-5):
    m = x.mean(dim=axis, keepdim=True)
    v = x.var(dim=axis, keepdim=True, unbiased=False)
    return (x - m) / torch.sqrt(v + eps)
def _scatter_add(tgt, idx, src, axis=0):
    return tgt.clone().index_add_(axis, idx, src)
def _segment_sum(src, seg, n):
    out = torch.zeros((n,) + src.shape[1:], dtype=src.dtype)
    return out.index_add_(0, seg, src)
def _pad(x, pw):
    flat = tuple(v for pair in reversed(pw) for v in pair)
    return torch.nn.functional.pad(x, flat)

kernel_name = 'recurrent_scan__spectral_fnet__moe_arch_mod__prompt'

def setup_inputs():

    _w = (lambda a: (lambda t: t.to(torch.bfloat16) if t.is_floating_point() else t)(torch.as_tensor(a)))
    def _A_setup():
        B, S, D = 1, 2048, 448
        ns = torch.arange(S)[:, None] * torch.arange(S)[None, :]
        nd = torch.arange(D)[:, None] * torch.arange(D)[None, :]
        Ws_re = torch.cos(-2.0 * torch.pi * ns / S).to(float)
        Ws_im = torch.sin(-2.0 * torch.pi * ns / S).to(float)
        Wd_re = torch.cos(-2.0 * torch.pi * nd / D).to(float)
        Wd_im = torch.sin(-2.0 * torch.pi * nd / D).to(float)
        return {
            "x": _w((lambda *s: torch.randn(*s, dtype=torch.bfloat16) * 0.05)(B, S, D)),
            "dft_seq_re": _w(Ws_re),
            "dft_seq_im": _w(Ws_im),
            "dft_hid_re": _w(Wd_re),
            "dft_hid_im": _w(Wd_im),
        }
    _A_in = _A_setup()

    def _B_setup():
        B, S, D, F, C = 1, 2048, 448, 1792, 1
        return {
            "x": _w((lambda *s: torch.randn(*s, dtype=torch.bfloat16) * 0.05)(B, S, D)),
            "w_r": _w((lambda *s: torch.randn(*s, dtype=torch.bfloat16) * 0.05)(D)),
            "w_gate": _w((lambda *s: torch.randn(*s, dtype=torch.bfloat16) * 0.05)(D, F)),
            "w_up": _w((lambda *s: torch.randn(*s, dtype=torch.bfloat16) * 0.05)(D, F)),
            "w_down": _w((lambda *s: torch.randn(*s, dtype=torch.bfloat16) * 0.05)(F, D)),
        }
    _B_in = _B_setup()

    return {
        "A_x": _A_in["x"],
        "A_dft_seq_re": _A_in["dft_seq_re"],
        "A_dft_seq_im": _A_in["dft_seq_im"],
        "A_dft_hid_re": _A_in["dft_hid_re"],
        "A_dft_hid_im": _A_in["dft_hid_im"],
        "B_x": _B_in["x"],
        "B_w_r": _B_in["w_r"],
        "B_w_gate": _B_in["w_gate"],
        "B_w_up": _B_in["w_up"],
        "B_w_down": _B_in["w_down"],
    }

def reference(A_x, A_dft_seq_re, A_dft_seq_im, A_dft_hid_re, A_dft_hid_im, B_x, B_w_r, B_w_gate, B_w_up, B_w_down):
    def _A_ref(x, dft_seq_re, dft_seq_im, dft_hid_re, dft_hid_im):
        a = torch.einsum("bsd,ed->bse", x, dft_hid_re)
        b = torch.einsum("bsd,ed->bse", x, dft_hid_im)
        y = torch.einsum("ts,bse->bte", dft_seq_re, a) - torch.einsum("ts,bse->bte", dft_seq_im, b)
        return y

    def _B_ref(x, w_r, w_gate, w_up, w_down):
        B, S, D = x.shape
        C = 1
        r = x @ w_r
        idx = torch.argsort(-r, axis=-1)[:, :C]
        idx_e = (lambda x, n, axis: torch.repeat_interleave(x, n, dim=axis))(idx.reshape(B, C, 1), D, axis=2)
        x_sel = (lambda x, i, axis: torch.take_along_dim(x, i, dim=axis))(x, idx_e, axis=1)
        g = _silu(x_sel @ w_gate)
        u = x_sel @ w_up
        y = (g * u) @ w_down
        r_sel = _sigmoid((lambda x, i, axis: torch.take_along_dim(x, i, dim=axis))(r, idx, axis=1))
        y = y * r_sel.reshape(B, C, 1)
        b_off = (torch.arange(B) * S).reshape(B, 1)
        flat_idx = (idx + b_off).reshape(B * C)
        zero = (x * 0.0).reshape(B * S, D)
        upd = _scatter_add(zero, flat_idx, y.reshape(B * C, D), axis=0)
        return x + upd.reshape(B, S, D)

    x = A_x
    xn = _layernorm(x, axis=-1)
    s = _A_ref(xn, A_dft_seq_re, A_dft_seq_im, A_dft_hid_re, A_dft_hid_im)
    g = _silu(_B_ref(xn, B_w_r, B_w_gate, B_w_up, B_w_down))
    return x + s * g
```

```python
import re
TRANS=('v_exp_f32','v_log_f32','v_rcp_f32','v_rsq_f32','v_sqrt_f32','v_sin_f32','v_cos_f32','v_rcp_iflag_f32')
def regs(tok):
    tok=tok.strip()
    tok=re.sub(r'^-','',tok); tok=re.sub(r'^abs\((.*)\)$',r'\1',tok); tok=tok.strip('|')
    m=re.fullmatch(r'([vsa])(\d+)',tok)
    if m: return {(m.group(1),int(m.group(2)))}
    m=re.fullmatch(r'([vsa])\[(\d+):(\d+)\]',tok)
    if m: return {(m.group(1),i) for i in range(int(m.group(2)),int(m.group(3))+1)}
    if tok=='vcc': return {('s','vcc_lo'),('s','vcc_hi')}
    if tok in('vcc_lo','vcc_hi'): return {('s',tok)}
    if tok=='exec': return {('s','exec_lo'),('s','exec_hi')}
    if tok in('exec_lo','exec_hi'): return {('s',tok)}
    if tok=='m0': return {('s','m0')}
    return set()
class Ins:
    def __init__(s,text):
        s.text=text
        t=text.split(';')[0].strip()
        s.op=t.split()[0]
        rest=t[len(s.op):].strip()
        ops=[];cur='';dep=0
        for ch in rest:
            if ch=='[':dep+=1
            if ch==']':dep-=1
            if ch==',' and dep==0: ops.append(cur.strip());cur=''
            else: cur+=ch
        if cur.strip(): ops.append(cur.strip())
        s.mods=''
        if ops:
            last=ops[-1].split()
            ops[-1]=last[0]; s.mods=' '.join(last[1:])
        s.ops=ops
        op=s.op
        s.valu=op.startswith('v_') and not op.startswith('v_mfma')
        s.mfma=op.startswith('v_mfma')
        s.salu=op.startswith('s_')
        s.vmem=op.startswith(('buffer_','global_'))
        s.ds=op.startswith('ds_')
        s.trans=op.replace('_e32','').replace('_e64','') in TRANS
        s.dpp='_dpp' in op or 'quad_perm' in s.mods or 'row_' in s.mods
        s.dot=op.startswith('v_dot')
        s.perml=op.startswith('v_permlane')
        R=[regs(o) for o in ops]
        W=set();Rd=set()
        if s.valu or s.mfma:
            W|=R[0]
            start=1
            if op.startswith(('v_add_co','v_sub_co','v_addc_co','v_subb_co','v_subrev_co')): W|=R[1]; start=2
            for r in R[start:]: Rd|=r
            if op.startswith(('v_fmac','v_dot2c','v_permlane','v_swap','v_writelane')) or s.dpp: Rd|=R[0]
            if op.startswith(('v_permlane','v_swap')): W|=R[1]
        elif s.vmem:
            lds=('lds' in s.mods.split()) or 'load_lds' in op
            if 'load' in op and not lds: W|=R[0]; [Rd.update(r) for r in R[1:]]
            else: [Rd.update(r) for r in R]
            if lds: Rd.add(('s','m0'))
            s.lds=lds
            s.wide_data=set()
            if 'store' in op and op.endswith(('x3','x4')):
                s.wide_data = R[0] if op.startswith('buffer') else R[1]
        elif s.ds:
            if op.startswith(('ds_read','ds_bpermute','ds_permute','ds_swizzle')): W|=R[0]; [Rd.update(r) for r in R[1:]]
            else: [Rd.update(r) for r in R]
        elif s.salu:
            if op.startswith(('s_cmp','s_bitcmp','s_cbranch','s_branch','s_waitcnt','s_barrier','s_nop','s_endpgm','s_setprio','s_sleep','s_setpc')):
                [Rd.update(r) for r in R]
            else:
                if R: W|=R[0]
                [Rd.update(r) for r in R[1:]]
                if 'saveexec' in op: W|=regs('exec')
        s.W=W; s.R=Rd
        if s.mfma: s.srcc=R[3]; s.srcab=R[1]|R[2]; s.passes=8 if '32x32' in op else 4
        s.states = (int(ops[0],0)+1) if op=='s_nop' else 1
def need(p,c):
    n=0
    vW={r for r in p.W if r[0] in 'va'}; sW={r for r in p.W if r[0]=='s'}
    if p.valu:
        if c.op.startswith(('v_readlane','v_readfirstlane')) and vW&c.R: n=max(n,1)
        if c.valu and sW&c.R: n=max(n,4 if c.op.startswith(('v_readlane','v_writelane')) else 2)
        if c.vmem and sW&c.R: n=max(n,5)
        if c.valu and (c.dpp or c.perml) and vW&c.R: n=max(n,2)
        if c.mfma and vW&c.R: n=max(n,2)
        if p.trans and c.valu and not c.trans and vW&c.R: n=max(n,1)
        if p.trans and (c.vmem or c.ds) and vW&c.R: n=max(n,1)
        if p.dot and vW&(c.R|c.W):
            if not (c.op==p.op and not (vW & (regs(c.ops[1])|regs(c.ops[2])))): n=max(n,3)
        if ('sdwa' in p.op or 'op_sel:' in p.mods) and c.valu and vW&c.R: n=max(n,1)
    if p.salu and ('s','m0') in p.W and ('s','m0') in c.R and c.vmem: n=max(n,1)
    if p.mfma:
        big={4:8,8:12}[p.passes]
        if c.mfma:
            if vW&c.srcab: n=max(n,big)
            if vW&c.srcc and not (vW==c.srcc and c.passes==p.passes): n=max(n,{4:6,8:10}[p.passes])
        elif vW&(c.R|c.W): n=max(n,big)
        if c.valu and p.srcc&c.W: n=max(n,{4:3,8:7}[p.passes])
    if p.vmem and getattr(p,'wide_data',None) and p.wide_data&c.W: n=max(n,2)
    return n
def fix_hazards(lines, verbose=False):
    out=[]; hist=[]; added=0
    for ln in lines:
        t=ln.split(';')[0].strip()
        if not t or t.endswith(':') or t.startswith('.'):
            out.append(ln); continue
        c=Ins(ln)
        dist=0; pad=0
        for p in reversed(hist):
            nd=need(p,c)
            if nd>dist: pad=max(pad,nd-dist)
            dist+=p.states
            if dist>=20: break
        if pad:
            nop=f's_nop {pad-1}'
            out.append(nop); hist.append(Ins(nop)); added+=1
            if verbose: print('pad',pad,'before',ln)
        out.append(ln); hist.append(c)
        if c.op in('s_branch','s_endpgm','s_setpc_b64'): hist=[]
    return out
class Asm:
    def __init__(s): s.L=[]
    def __call__(s,txt):
        for l in txt.split('\n'):
            l=l.strip()
            if l: s.L.append(l)
    def text(s,verbose=False): return '\n'.join(fix_hazards(s.L,verbose))+'\n'
```

```python
import sys, struct
from asmlib import Asm
NAME="recurrent_scan__spectral_fnet__moe_arch_mod__prompt_kernel"
def f2u(x): return struct.unpack('I',struct.pack('f',x))[0]
def hx(x): return '0x%08x'%f2u(x)
KEY=0x1000; FLAG=0x8000; PART=0x10000; HB=0x80000; STAMPS=0x200000; WSSZ=0x400000
XB=0; YB=0; HS=28672; F2B=HS; BPB=HS+4096; WRB=HS+8192; MISC=HS+32768
RS=MISC; NB=MISC+128; KM=MISC+256; IDXL=MISC+272
LDS=MISC+512
DNB=0; PB=28672; HHB=PB+5120; INFO=HHB+512; YS=INFO+64
SPIN=1<<16
HEADER=open('recurrent_scan__spectral_fnet__moe_arch_mod__prompt.s.ref').read().split('; Override')[0]
def gen(stamps=False):
    A=Asm()
    def ST(i):
        if stamps: A(f's_memrealtime s[{64+2*i}:{65+2*i}]')
    A(f'''.amdgcn_target "amdgcn-amd-amdhsa--gfx950"
.text
.globl {NAME}
.p2align 8
.type {NAME},@function
{NAME}:''')
    ST(0)
    A('''s_load_dwordx2 s[4:5], s[0:1], 0
s_load_dwordx8 s[8:15], s[0:1], 48
s_load_dwordx2 s[16:17], s[0:1], 80
s_load_dwordx2 s[20:21], s[0:1], 96
v_lshrrev_b32 v1, 6, v0
s_mov_b32 s6, 1835008
s_mov_b32 s7, 0x20000
v_readfirstlane_b32 s24, v1
v_and_b32 v0, 63, v0
s_cmp_ge_u32 s2, 256
s_cbranch_scc1 L_ffn
s_bfe_u32 s28, s2, 0x20003
s_and_b32 s25, s2, 7
s_sub_u32 s26, 16, s25
s_cmp_eq_u32 s25, 0
s_cselect_b32 s26, 8, s26
s_bitcmp1_b32 s2, 5
s_cselect_b32 s26, s26, s25
s_lshr_b32 s27, s2, 6
s_lshl4_add_u32 s26, s27, s26
s_sub_u32 s27, 128, s26
s_cmp_eq_u32 s26, 0
s_cselect_b32 s27, 64, s27
s_cmp_lt_u32 s24, 4
s_cbranch_scc1 L_mfma''')
    A(f'''s_sub_u32 s29, s24, 4
s_bitcmp1_b32 s24, 1
s_cselect_b32 s32, s27, s26
s_and_b32 s33, s24, 1
s_lshl_b32 s34, s33, 10
s_add_u32 s32, s32, s34
v_lshrrev_b32 v1, 3, v0
v_lshl_add_u32 v2, v1, 7, s32
v_mul_u32_u24 v3, 896, v2
v_lshrrev_b32 v4, 4, v0
s_lshl_b32 s34, s33, 2
v_xor_b32 v5, v0, v4
v_xor_b32 v5, s34, v5
v_and_b32 v5, 7, v5
v_lshlrev_b32 v5, 4, v5
v_add_u32 v3, v5, v3
v_lshlrev_b32 v6, 4, v0
s_mul_i32 s35, s29, 7168
s_lshl_b32 s36, s28, 8
s_mov_b32 s37, 7
s_lshl_b32 s38, s29, 10
s_add_u32 s38, s38, {WRB}
s_mov_b32 m0, s38
s_mov_b32 exec_hi, 0x00ffffff
s_waitcnt lgkmcnt(0)
global_load_lds_dwordx4 v6, s[8:9]
s_mov_b32 exec_hi, -1
L_xl:
s_lshl3_add_u32 m0, s36, s35
s_sub_u32 s37, s37, 1
buffer_load_dwordx4 v3, s[4:7], s36 offen lds
s_add_u32 s36, s36, 128
s_cmp_eq_u32 s36, 896
s_cselect_b32 s36, 0, s36
s_cmp_lg_u32 s37, 0
s_cbranch_scc1 L_xl''')
    ST(1)
    A(f'''s_cmp_lg_u32 s29, s28
s_cbranch_scc1 L_nononce
s_load_dwordx2 s[30:31], s[20:21], 0
L_nononce:''')
    A(f'''s_lshr_b32 s39, s2, 3
s_cmp_ge_u32 s29, 2
s_cbranch_scc1 L_pfd
s_cmp_eq_u32 s29, 0
s_cselect_b32 s40, s10, s12
s_cselect_b32 s41, s11, s13
s_mul_i32 s42, s39, 14*3584
s_mul_i32 s43, s25, 448
s_andn2_b32 s43, s43, 127
s_add_u32 s42, s42, s43
v_lshrrev_b32 v7, 2, v0
v_min_u32 v7, 13, v7
v_mul_u32_u24 v7, 3584, v7
v_and_b32 v8, 3, v0
v_lshl_add_u32 v7, v8, 7, v7
s_branch L_pfgo
L_pfd:
s_mov_b32 s40, s14
s_mov_b32 s41, s15
s_mul_i32 s42, s25, 224*896
s_mul_i32 s43, s39, 49*128
s_add_u32 s42, s42, s43
s_mul_i32 s43, s33, 24*128
s_add_u32 s42, s42, s43
v_min_u32 v7, 24, v0
v_lshlrev_b32 v7, 7, v7
L_pfgo:
v_add_u32 v7, s42, v7
global_load_dword v127, v7, s[40:41]''')
    A(f'''s_bitcmp1_b32 s28, 1
s_cselect_b32 s44, s27, s26
s_lshr_b32 s45, s44, 4
v_and_b32 v10, 15, v0
v_lshl_add_u32 v11, v10, 3, s45
v_cvt_f32_u32 v11, v11
v_mul_f32 v11, {hx(1/128)}, v11
s_lshl_b32 s46, s29, 4
v_add_u32 v12, s46, v4
v_cmp_eq_u32 vcc, 0, v12
v_cvt_f32_u32 v12, v12
v_mul_f32 v13, v11, v12
v_mul_f32 v14, 4.0, v11
s_bitcmp1_b32 s45, 0
s_cselect_b32 s46, -1.0, 1.0
v_mov_b32 v15, s46''')
    for jq in range(4):
        A(f'v_cos_f32 v16, v13\nv_sin_f32 v17, v13')
        if jq<3: A('v_add_f32 v13, v13, v14')
        if jq==0: A('v_cndmask_b32 v17, v17, v15, vcc')
        A(f'v_cvt_pk_bf16_f32 v{20+jq}, v16, v17')
    A(f'''s_lshl_b32 s46, s29, 10
v_add_u32 v16, s46, v6
ds_write_b128 v16, v[20:23] offset:{F2B}''')
    A(f'''v_and_b32 v12, 1, v4
v_lshl_add_u32 v13, v12, 9, s32
v_mul_u32_u24 v13, v13, v10
v_cvt_f32_u32 v13, v13
v_cvt_f32_u32 v14, v10
v_mul_f32 v14, {hx(1/16)}, v14
s_mov_b32 s46, {hx(0.25)}
s_bitcmp1_b32 s24, 1
s_cselect_b32 s46, {hx(-0.25)}, s46
s_cselect_b32 s47, 0, 1.0
s_cselect_b32 s48, 1.0, 0
s_cmp_eq_u32 s26, 0
s_cselect_b32 s46, 0, s46
s_cselect_b32 s47, s47, 1.0
s_cselect_b32 s48, s48, 1.0
v_cmp_lt_u32 vcc, 31, v0
v_mov_b32 v15, s46
v_mov_b32 v16, s47
v_mov_b32 v17, s48
v_cndmask_b32 v15, 0, v15, vcc
v_cndmask_b32 v19, v16, v17, vcc
v_fmamk_f32 v13, v13, {hx(1/2048)}, v15''')
    for i in range(4):
        A(f'v_cos_f32 v{24+i}, v13\nv_sin_f32 v{28+i}, v13')
        if i<3: A('v_add_f32 v13, v13, v14')
    A(f'''v_lshrrev_b32 v15, 5, v0
v_and_b32 v16, 31, v0
v_lshlrev_b32 v16, 4, v16
v_lshl_add_u32 v16, v15, 11, v16
s_lshl_b32 s46, s29, 9
v_add_u32 v18, s46, v16
s_lshl_b32 s46, s29, 5
v_lshl_add_u32 v17, v12, 4, s46
v_lshl_add_u32 v16, v1, 2, s46''')
    A(f'v_add_u32 v5, s38, v5\nv_add_u32 v6, s35, v6\ns_waitcnt vmcnt(8)')
    for c in range(7): A(f'ds_read_b128 v[{64+4*c}:{67+4*c}], v5 offset:{128*c}')
    A('v_mov_b32 v20, 0\nv_mov_b32 v21, 0\nv_mov_b32 v22, 0\nv_mov_b32 v23, 0\ns_mov_b32 s46, 0x3f803f80\ns_waitcnt lgkmcnt(0)')
    for k in range(28): A(f'v_dot2c_f32_bf16 v23, s46, v{64+k}')
    A(f'''s_add_u32 s30, s30, 0x9e3779b9
s_add_u32 s31, s31, 0x7f4a7c15
s_waitcnt vmcnt(1)''')
    ST(2)
    A('s_barrier')
    for c in range(7): A(f'ds_read_b128 v[{32+4*c}:{35+4*c}], v6 offset:{1024*c}')
    for c in range(7):
        A(f's_waitcnt lgkmcnt({6-c})' if not stamps else 's_waitcnt lgkmcnt(0)')
        for k in range(4*c,4*c+4):
            A(f'v_dot2c_f32_bf16 v20, s46, v{32+k}\nv_dot2c_f32_bf16 v21, v{32+k}, v{32+k}\nv_dot2c_f32_bf16 v22, v{64+k}, v{32+k}')
    for p in ['quad_perm:[1,0,3,2]','quad_perm:[2,3,0,1]','row_half_mirror']:
        for r in [23,20,21,22]: A(f'v_add_f32_dpp v{r}, v{r}, v{r} {p} row_mask:0xf bank_mask:0xf')
    A(f'''v_mul_f32 v20, {hx(1/448)}, v20
v_mul_f32_e64 v32, -v20, v20
v_fmamk_f32 v21, v21, {hx(1/448)}, v32
v_max_f32 v21, 0, v21
v_cvt_pk_bf16_f32 v21, v21, v21
v_and_b32 v21, 0xffff0000, v21
v_add_f32 v21, {hx(1e-5)}, v21
v_cvt_pk_bf16_f32 v21, v21, v21
v_and_b32 v21, 0xffff0000, v21
v_sqrt_f32 v21, v21
v_cvt_pk_bf16_f32 v37, v20, v21
v_and_b32 v21, 0xffff0000, v37
v_lshlrev_b32 v20, 16, v37
v_rcp_f32 v21, v21
v_fma_f32 v22, -v20, v23, v22
v_mul_f32 v20, v20, v21
ds_write_b32 v16, v21 offset:{RS}
ds_write_b32 v16, v20 offset:{NB}
ds_read_b128 v[40:43], v17 offset:{RS}
v_mul_f32 v22, v22, v21
v_ashrrev_i32 v32, 31, v22
v_or_b32 v32, 0x80000000, v32
v_xor_b32 v22, v22, v32
v_and_b32 v22, 0xfffff800, v22
v_or_b32 v36, v22, v2
v_max_u32_dpp v33, v36, v36 row_ror:8 row_mask:0xf bank_mask:0xf
v_mov_b32 v38, s30
v_mov_b32 v39, s31
v_readlane_b32 s46, v33, 0
v_readlane_b32 s47, v33, 16
v_readlane_b32 s48, v33, 32
v_readlane_b32 s49, v33, 48
s_max_u32 s46, s46, s47
s_max_u32 s48, s48, s49
s_max_u32 s46, s46, s48
s_cmp_lg_u32 s29, s28
s_cbranch_scc1 L_nokey
s_mov_b32 s22, {WSSZ}
s_mov_b32 s23, 0x20000
s_lshl_b32 s47, s2, 6
s_add_u32 s47, s47, {KEY}
v_cmp_eq_u32 vcc, s46, v36
s_ff1_i32_b64 s48, vcc
s_lshl_b64 exec, 1, s48
buffer_store_dwordx4 v[36:39], off, s[20:23], s47 sc1
s_mov_b64 exec, -1
L_nokey:''')
    ST(3)
    A(f'''s_lshl_b32 s47, s29, 2
v_mov_b32 v34, s47
v_mov_b32 v35, s46
ds_write_b32 v34, v35 offset:{KM}
s_waitcnt lgkmcnt(0)''')
    for i in range(4): A(f'v_mul_f32 v{40+i}, v19, v{40+i}')
    for i in range(4): A(f'v_mul_f32 v{24+i}, v{24+i}, v{40+i}\nv_mul_f32 v{28+i}, v{28+i}, v{40+i}')
    A(f'''v_cvt_pk_bf16_f32 v44, v24, v25
v_cvt_pk_bf16_f32 v45, v26, v27
v_cvt_pk_bf16_f32 v46, -v28, -v29
v_cvt_pk_bf16_f32 v47, -v30, -v31
ds_write_b128 v18, v[44:47] offset:{BPB}
s_waitcnt lgkmcnt(0)''')
    ST(4)
    A('s_barrier\ns_branch L_prep')
    CF=8; SF=36; ACC=64; AF=96
    A('L_mfma:')
    ST(1)
    A(f'''s_setprio 1
s_lshl2_add_u32 s29, s28, s24
s_mul_i32 s32, s29, 14
v_and_b32 v1, 15, v0
v_lshrrev_b32 v2, 4, v0
v_add_u32 v3, s32, v1
v_mul_u32_u24 v4, 9586980, v3
v_mul_u32_u24 v5, 37449, v3
v_add_u32 v5, 0x8000, v5
v_lshrrev_b32 v5, 16, v5
v_add_u32 v4, v4, v5
v_lshl_add_u32 v5, v2, 3, 3
v_mul_lo_u32 v5, v5, v4
v_lshlrev_b32 v6, 5, v4
v_cvt_f32_u32 v4, v4
v_mul_f32 v4, {hx(2.0**-32)}, v4
v_cos_f32 v120, v4
v_lshlrev_b32 v122, 31, v3
v_or_b32 v122, 1.0, v122
v_add_f32 v120, v120, v120''')
    T=64
    for k in range(7):
        A(f'''v_cvt_f32_i32 v80, v5
v_add_u32 v5, v5, v6
v_mul_f32 v80, {hx(2.0**-32)}, v80
v_add_f32 v81, v80, v4
v_cos_f32 v{T+6}, v80
v_sin_f32 v{T+7}, v80
v_cos_f32 v{T+8}, v81
v_sin_f32 v{T+9}, v81''')
        pk=lambda d,a,b: f'v_pk_fma_f32 v[{T+2*d}:{T+2*d+1}], v[120:121], v[{T+2*a}:{T+2*a+1}], v[{T+2*b}:{T+2*b+1}] op_sel_hi:[0,1,1] neg_lo:[0,0,1] neg_hi:[0,0,1]'
        cv=lambda p: f'v_cvt_pk_bf16_f32 v{CF+4*k+p}, v{T+4*p}, v{T+4*p+2}\nv_cvt_pk_bf16_f32 v{SF+4*k+p}, v{T+4*p+1}, v{T+4*p+3}'
        A(pk(2,3,4)); A(pk(5,4,3)); A(pk(1,2,3)); A(pk(6,5,4)); A(pk(0,1,2)); A(pk(7,6,5))
        A(cv(1)); A(cv(2)); A(cv(0)); A(cv(3))
    A(f'''v_lshrrev_b32 v4, 1, v1
v_xor_b32 v4, v4, v2
v_and_b32 v5, 7, v1
v_lshl_add_u32 v4, v5, 3, v4
v_lshlrev_b32 v4, 4, v4
v_lshrrev_b32 v5, 3, v1
v_mul_u32_u24 v5, 7168, v5
v_add_u32 v4, v4, v5
v_xor_b32 v5, 64, v4
v_lshlrev_b32 v6, 4, v0
v_lshlrev_b32 v7, 18, v2
v_lshl_add_u32 v7, v1, 2, v7
s_lshl_b32 s32, s29, 12
s_lshl_b32 s33, s26, 6
s_add_u32 s32, s32, s33
s_add_u32 s32, s32, {HB}
s_add_u32 s33, s32, 0x10000
s_add_u32 s34, s32, 0x20000
s_add_u32 s35, s32, 0x30000
s_mov_b32 s22, {WSSZ}
s_mov_b32 s23, 0x20000
s_waitcnt lgkmcnt(0)''')
    ST(2)
    A('s_barrier')
    def rd(kp):
        sl=kp%3
        for h in range(2):
            A(f'ds_read_b128 v[{AF+8*sl+4*h}:{AF+8*sl+4*h+3}], v{4+(kp&1)} offset:{h*14336+(kp>>1)*1024}')
    rd(0); rd(1); rd(2)
    if stamps: A('s_waitcnt lgkmcnt(0)')
    for kp in range(14):
        hh=kp//7; k=kp%7; sl=kp%3
        out=min(13,kp+2)-kp
        for h in range(2):
            A(f's_waitcnt lgkmcnt({2*out+1-h})')
            for cs in range(2):
                a=ACC+16*hh+8*h+4*cs; f=(SF if cs else CF)+4*k
                A(f'v_mfma_f32_16x16x32_bf16 v[{a}:{a+3}], v[{AF+8*sl+4*h}:{AF+8*sl+4*h+3}], v[{f}:{f+3}], '+(f'v[{a}:{a+3}]' if k else '0'))
        if kp+3<14: rd(kp+3)
    ST(3)
    A('s_barrier')
    for fr in range(4): A(f'ds_read_b128 v[{8+4*fr}:{11+4*fr}], v6 offset:{BPB+1024*fr}')
    for p in range(8):
        A(f'v_pk_fma_f32 v[{ACC+2*p}:{ACC+2*p+1}], v[122:123], v[{ACC+16+2*p}:{ACC+17+2*p}], v[{ACC+2*p}:{ACC+2*p+1}] op_sel_hi:[0,1,1]')
    for p in range(8): A(f'v_cvt_pk_bf16_f32 v{24+p}, v{ACC+2*p}, v{ACC+2*p+1}')
    A('''s_waitcnt lgkmcnt(0)
v_mfma_f32_16x16x32_bf16 v[32:35], v[8:11], v[24:27], 0
v_mfma_f32_16x16x32_bf16 v[36:39], v[16:19], v[24:27], 0
v_mfma_f32_16x16x32_bf16 v[32:35], v[12:15], v[28:31], v[32:35]
v_mfma_f32_16x16x32_bf16 v[36:39], v[20:23], v[28:31], v[36:39]''')
    for r in range(4):
        A(f'v_cvt_pk_bf16_f32 v{40+r}, v{32+r}, v{36+r}\nbuffer_store_dword v{40+r}, v7, s[20:23], s{32+r} offen sc1')
    ST(4)
    A('s_setprio 0')
    A(f'''L_prep:
s_mov_b32 s22, {WSSZ}
s_mov_b32 s23, 0x20000
s_mov_b32 s18, 1835008
s_mov_b32 s19, 0x20000
s_lshr_b32 s33, s28, 1
s_and_b32 s34, s28, 1
s_cmp_eq_u32 s33, 0
s_cselect_b32 s32, s26, s27
s_and_b32 s35, s24, 3
s_lshl_b32 s35, s35, 9
s_add_u32 s35, s35, s32
v_lshrrev_b32 v2, 4, v0
v_and_b32 v1, 15, v0
v_lshl_add_u32 v44, v2, 7, s35
s_mul_i32 s36, s34, 14
s_cmp_lt_u32 s24, 4
s_cbranch_scc1 L_dir
v_sub_u32 v44, 0x800, v44
v_and_b32 v44, 0x7ff, v44
s_sub_u32 s36, 42, s36
s_cmp_lg_u32 s26, 0
s_cselect_b32 s37, 1, 0
s_xor_b32 s33, s33, s37
L_dir:
v_lshrrev_b32 v45, 7, v44
v_min_u32 v46, 13, v1
v_add_u32 v46, s36, v46
s_lshl_b32 s37, s33, 6
v_lshl_add_u32 v47, v45, 2, s37
ds_read_b32 v48, v47 offset:{RS}
ds_read_b32 v49, v47 offset:{NB}
v_lshrrev_b32 v47, 1, v45
v_xor_b32 v47, v47, v46
v_and_b32 v47, 7, v47
v_and_b32 v50, 7, v45
v_lshl_add_u32 v47, v50, 3, v47
v_lshlrev_b32 v47, 4, v47
v_lshrrev_b32 v50, 3, v45
v_mul_u32_u24 v50, 7, v50
v_lshrrev_b32 v51, 3, v46
v_add_u32 v50, v50, v51
v_lshl_add_u32 v47, v50, 10, v47
s_mul_i32 s37, s33, 14336
v_add_u32 v47, s37, v47
ds_read_b128 v[52:55], v47
s_bfe_u32 s38, s32, 0x20004
v_lshlrev_b32 v6, 4, v0''')
    for sl in range(4):
        A(f'''s_add_u32 s37, s38, {sl}
s_and_b32 s37, s37, 3
s_lshl_b32 s{40+sl}, s37, 10
v_add_u32 v50, s{40+sl}, v6
ds_read_b128 v[{8+4*sl}:{11+4*sl}], v50 offset:{F2B}''')
    A(f'''s_and_b32 s37, s32, 15
s_lshl_b32 s37, s37, 4
s_lshl3_add_u32 s37, s34, s37
s_add_u32 s37, s37, s24
s_lshl_b32 s37, s37, 12
s_add_u32 s37, s37, {HB}
v_add_u32 v7, s37, v6
s_lshl_b32 s39, s24, 12
s_add_u32 s39, s39, {HS}
v_lshl_add_u32 v5, v0, 2, s39
v_mul_u32_u24 v3, 896, v44
v_lshl_add_u32 v3, v46, 4, v3
v_cmp_gt_u32 vcc, 14, v1
v_mov_b32 v50, 0x7fffffff
v_cndmask_b32 v3, v50, v3, vcc
s_mul_i32 s37, s24, 56
v_lshlrev_b32 v4, 11, v2
v_lshl_add_u32 v50, v1, 2, s37
v_sub_u32 v51, v4, v50
v_add_u32 v4, v4, v50
v_add_u32 v4, {YB+16}, v4
v_add_u32 v51, {YB+16*512+16+448}, v51
s_lshl_b32 s37, s24, 11
v_lshl_add_u32 v45, v0, 5, s37
v_cmp_ne_u32 vcc, 0, v46
s_waitcnt lgkmcnt(0)''')
    XV=56; GV=64
    for i in range(4):
        A(f'v_lshlrev_b32 v{XV+2*i}, 16, v{52+i}\nv_and_b32 v{XV+2*i+1}, 0xffff0000, v{52+i}')
    for i in range(8): A(f'v_fma_f32 v{GV+i}, v{XV+i}, v48, -v49')
    for i in range(8): A(f'v_mul_f32 v{72+i}, {hx(-1.4426950408889634)}, v{GV+i}')
    for i in range(8): A(f'v_exp_f32 v{72+i}, v{72+i}')
    for i in range(8): A(f'v_add_f32 v{72+i}, 1.0, v{72+i}')
    for i in range(8): A(f'v_rcp_f32 v{72+i}, v{72+i}')
    for i in range(8): A(f'v_mul_f32 v{GV+i}, v{GV+i}, v{72+i}')
    A(f'v_cndmask_b32 v{GV}, 0, v{GV}, vcc')
    A(f'''s_add_u32 s37, s28, 4
s_cmp_lg_u32 s24, s37
s_cbranch_scc0 L_poller
s_waitcnt vmcnt(0)''')
    ST(5)
    A('''s_barrier
s_barrier
s_branch L_go
L_poller:''')
    A(f'''v_mov_b32 v80, 0
ds_read_b128 v[84:87], v80 offset:{KM}
v_mov_b32 v82, s30
v_mov_b32 v83, s31
v_mov_b32 v81, 0
s_lshl_b32 s37, s28, 6
s_add_u32 s37, s37, s26
s_lshl_b32 s37, s37, 6
s_add_u32 s37, s37, {FLAG}
s_lshl_b32 s36, s34, 13
s_add_u32 s36, s36, {FLAG}
s_add_u32 s35, s36, 4096
v_lshlrev_b32 v96, 6, v0
s_waitcnt lgkmcnt(0)
v_max3_u32 v80, v84, v85, v86
v_max_u32 v80, v80, v87
s_mov_b32 s33, 0''')
    ST(5)
    A(f'''s_barrier
s_mov_b64 exec, 1
buffer_store_dwordx4 v[80:83], off, s[20:23], s37 sc1
s_mov_b64 exec, -1
L_poll:
buffer_load_dwordx4 v[84:87], v96, s[20:23], s36 offen sc1
buffer_load_dwordx4 v[88:91], v96, s[20:23], s35 offen sc1
s_add_u32 s33, s33, 1
s_cmp_gt_u32 s33, {SPIN}
s_cbranch_scc1 L_pollx
s_waitcnt vmcnt(0)
v_cmp_ne_u64 vcc, s[30:31], v[86:87]
v_cmp_ne_u64 s[44:45], s[30:31], v[90:91]
s_or_b64 vcc, vcc, s[44:45]
s_cbranch_scc1 L_poll
L_pollx:
s_barrier
L_go:''')
    ST(6)
    for sl in range(4):
        A(f's_add_u32 m0, s39, {1024*sl}\nbuffer_load_dwordx4 v7, s[20:23], s{40+sl} offen sc1 lds')
    A(f'''s_add_u32 s37, s28, 4
s_cmp_lg_u32 s24, s37
s_cbranch_scc1 L_noidx''')
    for p in ['quad_perm:[1,0,3,2]','quad_perm:[2,3,0,1]','row_half_mirror','row_mirror']:
        A(f'v_max_u32_dpp v84, v84, v84 {p} row_mask:0xf bank_mask:0xf')
    A(f'''v_readlane_b32 s46, v84, 0
v_readlane_b32 s47, v84, 16
v_readlane_b32 s48, v84, 32
v_readlane_b32 s49, v84, 48
s_max_u32 s46, s46, s47
s_max_u32 s48, s48, s49
s_max_u32 s46, s46, s48
s_and_b32 s46, s46, 0x7ff
v_mov_b32 v84, s46
v_mov_b32 v85, 0
ds_write_b32 v85, v84 offset:{IDXL}
L_noidx:''')
    for sl in range(4):
        A(f'''s_waitcnt vmcnt({3-sl})
ds_read2st64_b32 v[{24+4*sl}:{25+4*sl}], v5 offset0:{4*sl} offset1:{4*sl+1}
ds_read2st64_b32 v[{26+4*sl}:{27+4*sl}], v5 offset0:{4*sl+2} offset1:{4*sl+3}''')
        if sl>0:
            A(f's_waitcnt lgkmcnt(2)' if not stamps else 's_waitcnt lgkmcnt(0)')
            p=sl-1
            A(f'v_mfma_f32_16x16x32_bf16 v[40:43], v[{8+4*p}:{11+4*p}], v[{24+4*p}:{27+4*p}], '+('v[40:43]' if p else '0'))
    ST(7)
    A(f'''s_waitcnt lgkmcnt(0)
v_mfma_f32_16x16x32_bf16 v[40:43], v[20:23], v[36:39], v[40:43]
v_mov_b32 v80, 0
ds_write2st64_b32 v4, v40, v41 offset0:0 offset1:2
ds_write2st64_b32 v4, v42, v43 offset0:4 offset1:6
ds_write2st64_b32 v51, v40, v41 offset0:0 offset1:2
ds_write2st64_b32 v51, v42, v43 offset0:4 offset1:6
s_waitcnt lgkmcnt(0)
s_barrier
ds_read_b32 v81, v80 offset:{IDXL}
ds_read_b128 v[72:75], v45 offset:{YB+16}
ds_read_b128 v[76:79], v45 offset:{YB+32}
v_mov_b32 v50, 0x7fffffff
s_waitcnt lgkmcnt(1)
v_cmp_ne_u32 vcc, v81, v44''')
    for i in range(4): A(f'v_fmac_f32 v{XV+i}, v{72+i}, v{GV+i}')
    A('v_cndmask_b32 v3, v50, v3, vcc\ns_waitcnt lgkmcnt(0)')
    for i in range(4,8): A(f'v_fmac_f32 v{XV+i}, v{72+i}, v{GV+i}')
    for i in range(4): A(f'v_cvt_pk_bf16_f32 v{52+i}, v{XV+2*i}, v{XV+2*i+1}')
    A('buffer_store_dwordx4 v[52:55], v3, s[16:19], 0 offen')
    ST(8)
    if stamps: A('s_waitcnt vmcnt(0)'); ST(9); A('s_branch L_stamps')
    A('s_endpgm')
    A(f'''L_ffn:
s_cmp_ge_u32 s2, 312
s_cbranch_scc1 L_end
s_and_b32 s25, s2, 7
s_bfe_u32 s26, s2, 0x30003
s_mul_i32 s25, s25, 7
s_add_u32 s25, s25, s26
s_mov_b32 s22, {WSSZ}
s_mov_b32 s23, 0x20000
v_and_b32 v1, 15, v0
v_lshrrev_b32 v2, 4, v0
v_lshrrev_b32 v3, 3, v0
v_and_b32 v4, 7, v0
s_cmp_eq_u32 s24, 7
s_cbranch_scc1 L_fpoll
v_bfe_u32 v5, v0, 2, 1
v_lshl_add_u32 v6, v5, 2, v2
s_lshl_b32 s27, s24, 3
v_add_u32 v6, s27, v6
v_mul_u32_u24 v7, 8*3584, v6
v_and_b32 v8, 3, v0
v_lshl_add_u32 v7, v8, 4, v7
s_lshl_b32 s28, s25, 6
s_add_u32 s28, s28, 3584
v_add_u32 v10, s28, v7
v_mov_b32 v11, 0
v_cmp_lt_u32 vcc, 7, v1
v_mul_u32_u24 v14, 896, v3
v_lshl_add_u32 v14, v4, 4, v14
s_mul_i32 s28, s25, 32*896
s_lshl_b32 s29, s24, 7
s_add_u32 s28, s28, s29
v_add_u32 v14, s28, v14
s_mov_b32 s32, 3*3584
s_mov_b32 s33, 0
s_lshl_b32 s34, s24, 12
s_waitcnt lgkmcnt(0)
v_mov_b32 v12, s10
v_mov_b32 v13, s11
v_mov_b32 v15, s12
v_mov_b32 v16, s13
v_cndmask_b32 v12, v12, v15, vcc
v_cndmask_b32 v13, v13, v16, vcc
v_lshl_add_u64 v[10:11], v[10:11], 0, v[12:13]''')
    RW=32; FR=64; DF=16; AC=32
    for i in range(8):
        A(f'global_load_dwordx4 v[{RW+4*i}:{RW+4*i+3}], v[10:11], off offset:{(i%3-1)*3584}')
        if i%3==2: A('v_lshl_add_u64 v[10:11], v[10:11], 0, s[32:33]')
    for a in range(4):
        A(f's_add_u32 m0, s34, {1024*a}\nglobal_load_lds_dwordx4 v14, s[14:15]')
        if a<3: A(f'v_add_u32 v14, 8*896, v14')
    ST(1)
    A(f'''s_mov_b32 s36, 0x05040100
s_mov_b32 s37, 0x07060302
v_lshlrev_b32 v9, 4, v6
v_lshrrev_b32 v12, 2, v1
v_lshlrev_b32 v12, 7, v12
v_lshl_add_u32 v12, v8, 3, v12
v_lshl_add_u32 v12, v2, 10, v12
v_add_u32 v12, s34, v12
v_lshrrev_b32 v13, 3, v1
v_lshl_add_u32 v13, v13, 2, v8
v_mul_u32_u24 v13, 640, v13
v_lshl_add_u32 v13, v5, 2, v13
v_add_u32 v13, s27, v13
v_add_u32 v13, {PB}, v13
v_cmp_eq_u32 s[38:39], v5, v2
v_mul_u32_u24 v15, 80, v0
s_lshl_b32 s28, s24, 6
v_and_b32 v10, 31, v0
v_lshl_add_u32 v10, v10, 1, s28
v_lshl_add_u32 v11, v2, 4, s28
v_add_u32 v7, s27, v3
v_mul_u32_u24 v7, 7168, v7
v_lshl_add_u32 v7, v4, 4, v7
s_lshl_b32 s40, s25, 7
s_add_u32 s40, s40, {PART}
s_mul_i32 s41, s25, 7168
s_lshl_b32 s29, s24, 10
s_add_u32 s41, s41, s29
s_add_u32 s41, s41, {PART}
v_lshlrev_b32 v14, 4, v0
s_lshl_b32 s29, s24, 2
v_lshl_add_u32 v3, v4, 5, s29
v_mov_b32 v96, 0''')
    for ip in range(4):
        A(f's_waitcnt vmcnt({10-2*ip})')
        for dw in range(4):
            A(f'v_perm_b32 v{FR+8*dw+ip}, v{RW+8*ip+4+dw}, v{RW+8*ip+dw}, s36\nv_perm_b32 v{FR+8*dw+4+ip}, v{RW+8*ip+4+dw}, v{RW+8*ip+dw}, s37')
    ST(2)
    A('s_waitcnt vmcnt(0)')
    for t in range(4):
        A(f'ds_read_b64_tr_b16 v[{DF+4*t}:{DF+4*t+1}], v12 offset:{32*t}\nds_read_b64_tr_b16 v[{DF+4*t+2}:{DF+4*t+3}], v12 offset:{32*t+512}')
    ST(3)
    A(f'''s_waitcnt lgkmcnt(0)
s_barrier
ds_read_b128 v[100:103], v96 offset:{INFO}
ds_read_b64 v[106:107], v96 offset:{INFO+16}
s_waitcnt lgkmcnt(0)
v_add_u32 v9, v9, v100
buffer_load_dwordx4 v[108:111], v9, s[4:7], 0 offen''')
    ST(4)
    A('s_waitcnt vmcnt(0)')
    for i in range(4):
        A(f'''v_lshlrev_b32 v112, 16, v{108+i}
v_and_b32 v113, 0xffff0000, v{108+i}
v_fma_f32 v112, v112, v101, -v102
v_fma_f32 v113, v113, v101, -v102
v_cvt_pk_bf16_f32 v{108+i}, v112, v113''')
    for c in range(8):
        A(f'v_mfma_f32_16x16x32_bf16 v[{AC+4*c}:{AC+4*c+3}], v[108:111], v[{FR+4*c}:{FR+4*c+3}], 0')
    A('s_mov_b64 exec, s[38:39]')
    for c in range(0,8,2):
        A(f'ds_write2_b32 v13, v{AC+4*c}, v{AC+4*c+4} offset0:{20*c} offset1:{20*c+20}')
    A(f'''s_mov_b64 exec, -1
s_waitcnt lgkmcnt(0)''')
    ST(5)
    A(f'''s_barrier
ds_read_b128 v[64:67], v15 offset:{PB}
ds_read_b128 v[68:71], v15 offset:{PB+16}
ds_read_b128 v[72:75], v15 offset:{PB+32}
ds_read_b64 v[76:77], v15 offset:{PB+48}
s_waitcnt lgkmcnt(0)
v_pk_add_f32 v[64:65], v[64:65], v[66:67]
v_pk_add_f32 v[68:69], v[68:69], v[70:71]
v_pk_add_f32 v[72:73], v[72:73], v[74:75]
v_pk_add_f32 v[64:65], v[64:65], v[76:77]
v_pk_add_f32 v[68:69], v[68:69], v[72:73]
v_pk_add_f32 v[64:65], v[64:65], v[68:69]
v_add_f32 v66, v64, v65
v_add_f32 v67, v64, v65
v_permlane32_swap_b32 v66, v67
v_mul_f32 v68, {hx(-1.4426950408889634)}, v66
v_exp_f32 v68, v68
v_mul_f32 v67, v66, v67
v_add_f32 v68, 1.0, v68
v_rcp_f32 v68, v68
v_cmp_eq_u32 s[42:43], 1, v2
v_mul_f32 v67, v67, v68
v_cvt_pk_bf16_f32 v67, v67, v67
ds_write_b16 v10, v67 offset:{HHB}
ds_read_b128 v[68:71], v11 offset:{HHB}
v_cmp_eq_u32 s[44:45], 2, v2
v_cmp_eq_u32 vcc, 3, v2
v_mov_b32 v105, 0
s_waitcnt lgkmcnt(0)''')
    for t in range(4):
        A(f'v_mfma_f32_16x16x32_bf16 v[{AC+4*t}:{AC+4*t+3}], v[68:71], v[{DF+4*t}:{DF+4*t+3}], 0')
    A(f'''v_cndmask_b32 v104, v{AC}, v{AC+4}, s[42:43]
v_cndmask_b32 v104, v104, v{AC+8}, s[44:45]
v_cndmask_b32 v104, v104, v{AC+12}, vcc
buffer_store_dwordx4 v[104:107], v7, s[20:23], s40 offen sc1
s_mov_b32 s33, 0''')
    ST(6)
    A(f'''L_ppoll:
buffer_load_dwordx4 v[64:67], v14, s[20:23], s41 offen sc1
s_add_u32 s33, s33, 1
s_cmp_gt_u32 s33, {SPIN}
s_cbranch_scc1 L_ppollx
s_waitcnt vmcnt(0)
v_cmp_ne_u64 vcc, v[66:67], v[106:107]
s_cbranch_vccnz L_ppoll
L_ppollx:''')
    ST(7)
    A(f'''v_add_f32_dpp v64, v64, v64 row_ror:8 row_mask:0xf bank_mask:0xf
v_mov_b32 v65, v64
v_permlane16_swap_b32 v64, v65
v_add_f32 v66, v64, v65
v_add_f32 v67, v64, v65
v_permlane32_swap_b32 v66, v67
v_add_f32 v64, v66, v67
ds_write_b32 v3, v64 offset:{YS}
s_waitcnt lgkmcnt(0)
s_barrier''')
    ST(8)
    if stamps: ST(9); A('s_branch L_stamps')
    A('s_endpgm')
    A(f'''L_fpoll:
s_waitcnt lgkmcnt(0)
s_load_dwordx2 s[30:31], s[20:21], 0
s_mov_b32 s18, 1835008
s_mov_b32 s19, 0x20000
v_lshlrev_b32 v5, 6, v0
s_mov_b32 s36, {KEY}
s_mov_b32 s37, {KEY+4096}
s_mov_b32 s38, {KEY+8192}
s_mov_b32 s39, {KEY+12288}
s_lshl_b32 s27, s25, 3
v_add_u32 v6, s27, v4
v_sub_u32 v7, 448, v6
s_cmp_lt_u32 s25, 28
s_cselect_b64 vcc, -1, 0
v_cndmask_b32 v7, v7, v6, vcc
v_mul_u32_u24 v8, 4682, v7
v_lshrrev_b32 v8, 16, v8
v_min_u32 v8, 15, v8
v_mul_u32_u24 v9, 14, v8
v_sub_u32 v9, v7, v9
v_lshlrev_b32 v9, 2, v9
v_lshl_add_u32 v9, v8, 12, v9
v_lshl_add_u32 v9, v3, 6, v9
v_readlane_b32 s40, v8, 0
v_readlane_b32 s41, v8, 7
s_lshr_b32 s40, s40, 2
s_lshr_b32 s41, s41, 2
s_lshl_b32 s40, s40, 12
s_lshl_b32 s41, s41, 12
s_add_u32 s40, s40, {FLAG}
s_add_u32 s41, s41, {FLAG}
s_mov_b32 s33, 0
s_waitcnt lgkmcnt(0)
s_add_u32 s30, s30, 0x9e3779b9
s_add_u32 s31, s31, 0x7f4a7c15''')
    ST(1)
    A(f'''L_kpoll:
buffer_load_dwordx4 v[16:19], v5, s[20:23], s36 offen sc1
buffer_load_dwordx4 v[20:23], v5, s[20:23], s37 offen sc1
buffer_load_dwordx4 v[24:27], v5, s[20:23], s38 offen sc1
buffer_load_dwordx4 v[28:31], v5, s[20:23], s39 offen sc1
s_add_u32 s33, s33, 1
s_cmp_gt_u32 s33, {SPIN}
s_cbranch_scc1 L_kpollx
s_waitcnt vmcnt(0)
v_cmp_ne_u64 vcc, s[30:31], v[18:19]
v_cmp_ne_u64 s[42:43], s[30:31], v[22:23]
v_cmp_ne_u64 s[44:45], s[30:31], v[26:27]
v_cmp_ne_u64 s[46:47], s[30:31], v[30:31]
s_or_b64 vcc, vcc, s[42:43]
s_or_b64 s[44:45], s[44:45], s[46:47]
s_or_b64 vcc, vcc, s[44:45]
s_cbranch_scc1 L_kpoll
L_kpollx:''')
    ST(2)
    A(f'''v_max3_u32 v32, v16, v20, v24
v_max_u32 v32, v32, v28
v_cmp_eq_u32 vcc, v32, v20
v_cmp_eq_u32 s[42:43], v32, v24
v_cmp_eq_u32 s[44:45], v32, v28
v_max_u32_dpp v33, v32, v32 quad_perm:[1,0,3,2] row_mask:0xf bank_mask:0xf
v_cndmask_b32 v17, v17, v21, vcc
v_cndmask_b32 v17, v17, v25, s[42:43]
v_max_u32_dpp v33, v33, v33 quad_perm:[2,3,0,1] row_mask:0xf bank_mask:0xf
v_cndmask_b32 v17, v17, v29, s[44:45]
v_max_u32_dpp v33, v33, v33 row_half_mirror row_mask:0xf bank_mask:0xf
v_max_u32_dpp v33, v33, v33 row_mirror row_mask:0xf bank_mask:0xf
v_readlane_b32 s46, v33, 0
v_readlane_b32 s47, v33, 16
v_readlane_b32 s48, v33, 32
v_readlane_b32 s49, v33, 48
s_max_u32 s46, s46, s47
s_max_u32 s48, s48, s49
s_max_u32 s46, s46, s48
v_cmp_eq_u32 vcc, s46, v32
s_ff1_i32_b64 s47, vcc
v_readlane_b32 s47, v17, s47
s_and_b32 s48, s46, 0x7ff
s_mul_i32 s49, s48, 896
s_and_b32 s50, s47, 0xffff0000
s_lshl_b32 s51, s47, 16
v_rcp_f32 v37, s50
v_mov_b32 v36, s49
v_mov_b32 v40, s30
v_mov_b32 v41, s31
v_mov_b32 v42, 0
v_mul_f32 v38, s51, v37
ds_write_b128 v42, v[36:39] offset:{INFO}
ds_write_b64 v42, v[40:41] offset:{INFO+16}
s_waitcnt lgkmcnt(0)''')
    ST(3)
    A(f'''s_barrier
v_lshl_add_u32 v10, v6, 1, s49
buffer_load_ushort v11, v10, s[4:7], 0 offen
s_sub_u32 s52, 0x800, s48
s_and_b32 s52, s52, 0x7ff
s_cmp_lt_u32 s25, 28
s_cselect_b32 s52, s48, s52
s_lshr_b32 s53, s52, 4
s_and_b32 s52, s52, 15
s_lshl_b32 s52, s52, 16
s_add_u32 s52, s52, {HB}
v_cvt_f32_u32 v12, s53
v_cvt_f32_u32 v13, v3
v_mul_f32 v12, {hx(1/128)}, v12
v_mul_f32 v13, v13, v12
v_mul_f32 v12, {hx(8.0)}, v12
s_bitcmp1_b32 s53, 0
s_cselect_b32 s53, -1.0, 1.0
v_mov_b32 v14, s53
v_cmp_eq_u32 vcc, 0, v3''')
    for i in range(8):
        A('v_cos_f32 v16, v13\nv_sin_f32 v17, v13')
        if i<7: A('v_add_f32 v13, v13, v12')
        if i==0: A('v_cndmask_b32 v17, v17, v14, vcc')
        A(f'v_cvt_pk_bf16_f32 v{48+i}, v16, v17')
    A(f'''s_andn2_b32 s46, s46, 0x7ff
s_ashr_i32 s47, s46, 31
s_not_b32 s47, s47
s_or_b32 s47, s47, 0x80000000
s_xor_b32 s46, s46, s47
v_mov_b32 v15, s46
v_mul_f32 v15, {hx(-1.4426950408889634)}, v15
v_exp_f32 v15, v15
v_add_f32 v15, 1.0, v15
v_rcp_f32 v15, v15
v_lshlrev_b32 v43, 5, v4
s_mov_b32 s33, 0
s_barrier''')
    ST(4)
    A(f'''L_hpoll:
buffer_load_dwordx4 v[16:19], v5, s[20:23], s40 offen sc1
buffer_load_dwordx4 v[20:23], v5, s[20:23], s41 offen sc1
s_add_u32 s33, s33, 1
s_cmp_gt_u32 s33, {SPIN}
s_cbranch_scc1 L_hpollx
s_waitcnt vmcnt(0)
v_cmp_ne_u64 vcc, s[30:31], v[18:19]
v_cmp_ne_u64 s[42:43], s[30:31], v[22:23]
s_or_b64 vcc, vcc, s[42:43]
s_cbranch_scc1 L_hpoll
L_hpollx:''')
    ST(5)
    for i in range(8): A(f'buffer_load_dword v{56+i}, v9, s[20:23], s52 offen offset:{512*i} sc1')
    A(f'''v_mov_b32 v44, 0
v_lshlrev_b32 v11, 16, v11
v_fma_f32 v45, v11, v37, -v38
v_cmp_ne_u32 vcc, 0, v6
s_waitcnt vmcnt(0)''')
    ST(6)
    for i in range(8): A(f'v_dot2c_f32_bf16 v44, v{48+i}, v{56+i}')
    A(f'''v_add_f32_dpp v44, v44, v44 row_ror:8 row_mask:0xf bank_mask:0xf
v_mov_b32 v46, v44
v_permlane16_swap_b32 v44, v46
v_add_f32 v16, v44, v46
v_add_f32 v17, v44, v46
v_permlane32_swap_b32 v16, v17
v_add_f32 v44, v16, v17
v_cndmask_b32 v44, 0, v44, vcc''')
    ST(7)
    A(f'''s_barrier
ds_read_b128 v[16:19], v43 offset:{YS}
ds_read_b96 v[20:22], v43 offset:{YS+16}
s_waitcnt lgkmcnt(0)
v_pk_add_f32 v[16:17], v[16:17], v[18:19]
v_add_f32 v20, v20, v21
v_add_f32 v16, v16, v17
v_add_f32 v20, v20, v22
v_add_f32 v16, v16, v20
v_fmac_f32 v45, v16, v15
v_mul_f32 v16, {hx(-1.4426950408889634)}, v45
v_exp_f32 v16, v16
v_mul_f32 v45, v45, v44
v_add_f32 v16, 1.0, v16
v_rcp_f32 v16, v16
s_mov_b64 exec, 0xff
v_fmac_f32 v11, v45, v16
v_cvt_pk_bf16_f32 v11, v11, v11
buffer_store_short v11, v10, s[16:19], 0 offen
s_cmp_lg_u32 s25, 0
s_cbranch_scc1 L_noctl
s_mov_b64 exec, 1
buffer_store_dwordx2 v[40:41], off, s[20:23], 0
L_noctl:''')
    ST(8)
    if stamps:
        A('s_waitcnt vmcnt(0)'); ST(9)
        A(f'''L_stamps:
s_waitcnt lgkmcnt(0)
s_mov_b64 exec, 1
s_lshl3_add_u32 s3, s2, s24
s_lshl_b32 s3, s3, 6
s_add_u32 s3, s3, {STAMPS}''')
        for i in range(10): A(f'v_mov_b32 v{4+i}, s{64+2*i}')
        A('v_mov_b32 v14, s33\nv_mov_b32 v15, 0')
        A('buffer_store_dwordx4 v[4:7], off, s[20:23], s3\nbuffer_store_dwordx4 v[8:11], off, s[20:23], s3 offset:16\nbuffer_store_dwordx4 v[12:15], off, s[20:23], s3 offset:32')
    A('L_end:\ns_endpgm')
    A(f'''.section .rodata,"a"
.p2align 6
.amdhsa_kernel {NAME}
.amdhsa_next_free_vgpr 128
.amdhsa_next_free_sgpr 96
.amdhsa_accum_offset 128
.amdhsa_group_segment_fixed_size 0
.amdhsa_kernarg_size 104
.amdhsa_user_sgpr_count 2
.amdhsa_user_sgpr_kernarg_segment_ptr 1
.amdhsa_system_sgpr_workgroup_id_x 1
.end_amdhsa_kernel''')
    return HEADER+f'; @launch grid=(312,1,1) block=(512,1,1) lds={LDS}\n'+A.text()
if __name__=='__main__':
    open('k1.s','w').write(gen(False))
    open('k1_st.s','w').write(gen(True))
```

```python
import sys, struct
from asmlib import Asm
NAME="recurrent_scan__spectral_fnet__moe_arch_mod__prompt_kernel"
def f2u(x): return struct.unpack('I',struct.pack('f',x))[0]
def hx(x): return '0x%08x'%f2u(x)
KEY=0x1000; FLAG=0x8000; PART=0x10000; HB=0x80000; STAMPS=0x200000; WSSZ=0x400000
XB=0; YB=0; HS=28672; F2B=HS; BPB=HS+4096; WRB=HS+8192; MISC=HS+32768
RS=MISC; NB=MISC+128; KM=MISC+256; IDXL=MISC+272
LDS=MISC+512
DNB=0; PB=28672; HHB=PB+5120; INFO=HHB+512; YS=INFO+64
SPIN=1<<16
HEADER=open('recurrent_scan__spectral_fnet__moe_arch_mod__prompt.s.ref').read().split('; Override')[0]
def gen(stamps=False, amp=None):
    A=Asm()
    def ST(i):
        if stamps: A(f's_memrealtime s[{64+2*i}:{65+2*i}]')
    A(f'''.amdgcn_target "amdgcn-amd-amdhsa--gfx950"
.text
.globl {NAME}
.p2align 8
.type {NAME},@function
{NAME}:''')
    ST(0)
    A('''s_load_dwordx2 s[4:5], s[0:1], 0
s_load_dwordx8 s[8:15], s[0:1], 48
s_load_dwordx2 s[16:17], s[0:1], 80
s_load_dwordx2 s[20:21], s[0:1], 96
v_lshrrev_b32 v1, 6, v0
s_mov_b32 s6, 1835008
s_mov_b32 s7, 0x20000
v_readfirstlane_b32 s24, v1
v_and_b32 v0, 63, v0
s_cmp_ge_u32 s2, 256
s_cbranch_scc1 L_ffn
s_bfe_u32 s28, s2, 0x20003
s_and_b32 s25, s2, 7
s_sub_u32 s26, 16, s25
s_cmp_eq_u32 s25, 0
s_cselect_b32 s26, 8, s26
s_bitcmp1_b32 s2, 5
s_cselect_b32 s26, s26, s25
s_lshr_b32 s27, s2, 6
s_lshl4_add_u32 s26, s27, s26
s_sub_u32 s27, 128, s26
s_cmp_eq_u32 s26, 0
s_cselect_b32 s27, 64, s27
s_cmp_lt_u32 s24, 4
s_cbranch_scc1 L_mfma''')
    A(f'''s_sub_u32 s29, s24, 4
s_bitcmp1_b32 s24, 1
s_cselect_b32 s32, s27, s26
s_and_b32 s33, s24, 1
s_lshl_b32 s34, s33, 10
s_add_u32 s32, s32, s34
v_lshrrev_b32 v1, 3, v0
v_lshl_add_u32 v2, v1, 7, s32
v_mul_u32_u24 v3, 896, v2
v_lshrrev_b32 v4, 4, v0
s_lshl_b32 s34, s33, 2
v_xor_b32 v5, v0, v4
v_xor_b32 v5, s34, v5
v_and_b32 v5, 7, v5
v_lshlrev_b32 v5, 4, v5
v_add_u32 v3, v5, v3
v_lshlrev_b32 v6, 4, v0
s_mul_i32 s35, s29, 7168
s_lshl_b32 s36, s28, 8
s_mov_b32 s37, 7
s_lshl_b32 s38, s29, 10
s_add_u32 s38, s38, {WRB}
s_mov_b32 m0, s38
s_mov_b32 exec_hi, 0x00ffffff
s_waitcnt lgkmcnt(0)
global_load_lds_dwordx4 v6, s[8:9]
s_mov_b32 exec_hi, -1
L_xl:
s_lshl3_add_u32 m0, s36, s35
s_sub_u32 s37, s37, 1
buffer_load_dwordx4 v3, s[4:7], s36 offen lds
s_add_u32 s36, s36, 128
s_cmp_eq_u32 s36, 896
s_cselect_b32 s36, 0, s36
s_cmp_lg_u32 s37, 0
s_cbranch_scc1 L_xl''')
    ST(1)
    A(f'''s_cmp_lg_u32 s29, s28
s_cbranch_scc1 L_nononce
s_load_dwordx2 s[30:31], s[20:21], 0
L_nononce:''')
    A(f'''s_lshr_b32 s39, s2, 3
s_cmp_ge_u32 s29, 2
s_cbranch_scc1 L_pfd
s_cmp_eq_u32 s29, 0
s_cselect_b32 s40, s10, s12
s_cselect_b32 s41, s11, s13
s_mul_i32 s42, s39, 14*3584
s_mul_i32 s43, s25, 448
s_andn2_b32 s43, s43, 127
s_add_u32 s42, s42, s43
v_lshrrev_b32 v7, 2, v0
v_min_u32 v7, 13, v7
v_mul_u32_u24 v7, 3584, v7
v_and_b32 v8, 3, v0
v_lshl_add_u32 v7, v8, 7, v7
s_branch L_pfgo
L_pfd:
s_mov_b32 s40, s14
s_mov_b32 s41, s15
s_mul_i32 s42, s25, 224*896
s_mul_i32 s43, s39, 49*128
s_add_u32 s42, s42, s43
s_mul_i32 s43, s33, 24*128
s_add_u32 s42, s42, s43
v_min_u32 v7, 24, v0
v_lshlrev_b32 v7, 7, v7
L_pfgo:
v_add_u32 v7, s42, v7
global_load_dword v127, v7, s[40:41]''')
    A(f'''s_bitcmp1_b32 s28, 1
s_cselect_b32 s44, s27, s26
s_lshr_b32 s45, s44, 4
v_and_b32 v10, 15, v0
v_lshl_add_u32 v11, v10, 3, s45
v_cvt_f32_u32 v11, v11
v_mul_f32 v11, {hx(1/128)}, v11
s_lshl_b32 s46, s29, 4
v_add_u32 v12, s46, v4
v_cmp_eq_u32 vcc, 0, v12
v_cvt_f32_u32 v12, v12
v_mul_f32 v13, v11, v12
v_mul_f32 v14, 4.0, v11
s_bitcmp1_b32 s45, 0
s_cselect_b32 s46, -1.0, 1.0
v_mov_b32 v15, s46''')
    for jq in range(4):
        A(f'v_cos_f32 v16, v13\nv_sin_f32 v17, v13')
        if jq<3: A('v_add_f32 v13, v13, v14')
        if jq==0: A('v_cndmask_b32 v17, v17, v15, vcc')
        A(f'v_cvt_pk_bf16_f32 v{20+jq}, v16, v17')
    A(f'''s_lshl_b32 s46, s29, 10
v_add_u32 v16, s46, v6
ds_write_b128 v16, v[20:23] offset:{F2B}''')
    A(f'''v_and_b32 v12, 1, v4
v_lshl_add_u32 v13, v12, 9, s32
v_mul_u32_u24 v13, v13, v10
v_cvt_f32_u32 v13, v13
v_cvt_f32_u32 v14, v10
v_mul_f32 v14, {hx(1/16)}, v14
s_mov_b32 s46, {hx(0.25)}
s_bitcmp1_b32 s24, 1
s_cselect_b32 s46, {hx(-0.25)}, s46
s_cselect_b32 s47, 0, 1.0
s_cselect_b32 s48, 1.0, 0
s_cmp_eq_u32 s26, 0
s_cselect_b32 s46, 0, s46
s_cselect_b32 s47, s47, 1.0
s_cselect_b32 s48, s48, 1.0
v_cmp_lt_u32 vcc, 31, v0
v_mov_b32 v15, s46
v_mov_b32 v16, s47
v_mov_b32 v17, s48
v_cndmask_b32 v15, 0, v15, vcc
v_cndmask_b32 v19, v16, v17, vcc
v_fmamk_f32 v13, v13, {hx(1/2048)}, v15''')
    for i in range(4):
        A(f'v_cos_f32 v{24+i}, v13\nv_sin_f32 v{28+i}, v13')
        if i<3: A('v_add_f32 v13, v13, v14')
    A(f'''v_lshrrev_b32 v15, 5, v0
v_and_b32 v16, 31, v0
v_lshlrev_b32 v16, 4, v16
v_lshl_add_u32 v16, v15, 11, v16
s_lshl_b32 s46, s29, 9
v_add_u32 v18, s46, v16
s_lshl_b32 s46, s29, 5
v_lshl_add_u32 v17, v12, 4, s46
v_lshl_add_u32 v16, v1, 2, s46''')
    A(f'v_add_u32 v5, s38, v5\nv_add_u32 v6, s35, v6\ns_waitcnt vmcnt(8)')
    for c in range(7): A(f'ds_read_b128 v[{64+4*c}:{67+4*c}], v5 offset:{128*c}')
    A('v_mov_b32 v20, 0\nv_mov_b32 v21, 0\nv_mov_b32 v22, 0\nv_mov_b32 v23, 0\ns_mov_b32 s46, 0x3f803f80\ns_waitcnt lgkmcnt(0)')
    for k in range(28): A(f'v_dot2c_f32_bf16 v23, s46, v{64+k}')
    A(f'''s_add_u32 s30, s30, 0x9e3779b9
s_add_u32 s31, s31, 0x7f4a7c15
s_waitcnt vmcnt(1)''')
    ST(2)
    A('s_barrier')
    for c in range(7): A(f'ds_read_b128 v[{32+4*c}:{35+4*c}], v6 offset:{1024*c}')
    for c in range(7):
        A(f's_waitcnt lgkmcnt({6-c})' if not stamps else 's_waitcnt lgkmcnt(0)')
        for k in range(4*c,4*c+4):
            A(f'v_dot2c_f32_bf16 v20, s46, v{32+k}\nv_dot2c_f32_bf16 v21, v{32+k}, v{32+k}\nv_dot2c_f32_bf16 v22, v{64+k}, v{32+k}')
    for p in ['quad_perm:[1,0,3,2]','quad_perm:[2,3,0,1]','row_half_mirror']:
        for r in [23,20,21,22]: A(f'v_add_f32_dpp v{r}, v{r}, v{r} {p} row_mask:0xf bank_mask:0xf')
    A(f'''v_mul_f32 v20, {hx(1/448)}, v20
v_mul_f32_e64 v32, -v20, v20
v_fmamk_f32 v21, v21, {hx(1/448)}, v32
v_max_f32 v21, 0, v21
v_cvt_pk_bf16_f32 v21, v21, v21
v_and_b32 v21, 0xffff0000, v21
v_add_f32 v21, {hx(1e-5)}, v21
v_cvt_pk_bf16_f32 v21, v21, v21
v_and_b32 v21, 0xffff0000, v21
v_sqrt_f32 v21, v21
v_cvt_pk_bf16_f32 v37, v20, v21
v_and_b32 v21, 0xffff0000, v37
v_lshlrev_b32 v20, 16, v37
v_rcp_f32 v21, v21
v_fma_f32 v22, -v20, v23, v22
v_mul_f32 v20, v20, v21
ds_write_b32 v16, v21 offset:{RS}
ds_write_b32 v16, v20 offset:{NB}
ds_read_b128 v[40:43], v17 offset:{RS}
v_mul_f32 v22, v22, v21
v_ashrrev_i32 v32, 31, v22
v_or_b32 v32, 0x80000000, v32
v_xor_b32 v22, v22, v32
v_and_b32 v22, 0xfffff800, v22
v_or_b32 v36, v22, v2
v_max_u32_dpp v33, v36, v36 row_ror:8 row_mask:0xf bank_mask:0xf
v_mov_b32 v38, s30
v_mov_b32 v39, s31
v_readlane_b32 s46, v33, 0
v_readlane_b32 s47, v33, 16
v_readlane_b32 s48, v33, 32
v_readlane_b32 s49, v33, 48
s_max_u32 s46, s46, s47
s_max_u32 s48, s48, s49
s_max_u32 s46, s46, s48
s_cmp_lg_u32 s29, s28
s_cbranch_scc1 L_nokey
s_mov_b32 s22, {WSSZ}
s_mov_b32 s23, 0x20000
s_lshl_b32 s47, s2, 6
s_add_u32 s47, s47, {KEY}
v_cmp_eq_u32 vcc, s46, v36
s_ff1_i32_b64 s48, vcc
s_lshl_b64 exec, 1, s48
buffer_store_dwordx4 v[36:39], off, s[20:23], s47 sc1
s_mov_b64 exec, -1
L_nokey:''')
    ST(3)
    A(f'''s_lshl_b32 s47, s29, 2
v_mov_b32 v34, s47
v_mov_b32 v35, s46
ds_write_b32 v34, v35 offset:{KM}
s_waitcnt lgkmcnt(0)''')
    for i in range(4): A(f'v_mul_f32 v{40+i}, v19, v{40+i}')
    for i in range(4): A(f'v_mul_f32 v{24+i}, v{24+i}, v{40+i}\nv_mul_f32 v{28+i}, v{28+i}, v{40+i}')
    A(f'''v_cvt_pk_bf16_f32 v44, v24, v25
v_cvt_pk_bf16_f32 v45, v26, v27
v_cvt_pk_bf16_f32 v46, -v28, -v29
v_cvt_pk_bf16_f32 v47, -v30, -v31
ds_write_b128 v18, v[44:47] offset:{BPB}
s_waitcnt lgkmcnt(0)''')
    ST(4)
    A('s_barrier\ns_branch L_prep')
    CF=8; SF=36; ACC=64; AF=96
    A('L_mfma:')
    ST(1)
    A(f'''s_setprio 1
s_lshl2_add_u32 s29, s28, s24
s_mul_i32 s32, s29, 14
v_and_b32 v1, 15, v0
v_lshrrev_b32 v2, 4, v0
v_add_u32 v3, s32, v1
v_mul_u32_u24 v4, 9586980, v3
v_mul_u32_u24 v5, 37449, v3
v_add_u32 v5, 0x8000, v5
v_lshrrev_b32 v5, 16, v5
v_add_u32 v4, v4, v5
v_lshl_add_u32 v5, v2, 3, 3
v_mul_lo_u32 v5, v5, v4
v_lshlrev_b32 v6, 5, v4
v_cvt_f32_u32 v4, v4
v_mul_f32 v4, {hx(2.0**-32)}, v4
v_cos_f32 v120, v4
v_lshlrev_b32 v122, 31, v3
v_or_b32 v122, 1.0, v122
v_add_f32 v120, v120, v120''')
    T=64
    for k in range(7):
        A(f'''v_cvt_f32_i32 v80, v5
v_add_u32 v5, v5, v6
v_mul_f32 v80, {hx(2.0**-32)}, v80
v_add_f32 v81, v80, v4
v_cos_f32 v{T+6}, v80
v_sin_f32 v{T+7}, v80
v_cos_f32 v{T+8}, v81
v_sin_f32 v{T+9}, v81''')
        pk=lambda d,a,b: f'v_pk_fma_f32 v[{T+2*d}:{T+2*d+1}], v[120:121], v[{T+2*a}:{T+2*a+1}], v[{T+2*b}:{T+2*b+1}] op_sel_hi:[0,1,1] neg_lo:[0,0,1] neg_hi:[0,0,1]'
        cv=lambda p: f'v_cvt_pk_bf16_f32 v{CF+4*k+p}, v{T+4*p}, v{T+4*p+2}\nv_cvt_pk_bf16_f32 v{SF+4*k+p}, v{T+4*p+1}, v{T+4*p+3}'
        A(pk(2,3,4)); A(pk(5,4,3)); A(pk(1,2,3)); A(pk(6,5,4)); A(pk(0,1,2)); A(pk(7,6,5))
        A(cv(1)); A(cv(2)); A(cv(0)); A(cv(3))
    A(f'''v_lshrrev_b32 v4, 1, v1
v_xor_b32 v4, v4, v2
v_and_b32 v5, 7, v1
v_lshl_add_u32 v4, v5, 3, v4
v_lshlrev_b32 v4, 4, v4
v_lshrrev_b32 v5, 3, v1
v_mul_u32_u24 v5, 7168, v5
v_add_u32 v4, v4, v5
v_xor_b32 v5, 64, v4
v_lshlrev_b32 v6, 4, v0
v_lshlrev_b32 v7, 18, v2
v_lshl_add_u32 v7, v1, 2, v7
s_lshl_b32 s32, s29, 12
s_lshl_b32 s33, s26, 6
s_add_u32 s32, s32, s33
s_add_u32 s32, s32, {HB}
s_add_u32 s33, s32, 0x10000
s_add_u32 s34, s32, 0x20000
s_add_u32 s35, s32, 0x30000
s_mov_b32 s22, {WSSZ}
s_mov_b32 s23, 0x20000
s_waitcnt lgkmcnt(0)''')
    ST(2)
    A('s_barrier')
    def rd(kp):
        sl=kp%3
        for h in range(2):
            A(f'ds_read_b128 v[{AF+8*sl+4*h}:{AF+8*sl+4*h+3}], v{4+(kp&1)} offset:{h*14336+(kp>>1)*1024}')
    rd(0); rd(1); rd(2)
    if stamps: A('s_waitcnt lgkmcnt(0)')
    for kp in range(14):
        hh=kp//7; k=kp%7; sl=kp%3
        out=min(13,kp+2)-kp
        for h in range(2):
            A(f's_waitcnt lgkmcnt({2*out+1-h})')
            for cs in range(2):
                a=ACC+16*hh+8*h+4*cs; f=(SF if cs else CF)+4*k
                A(f'v_mfma_f32_16x16x32_bf16 v[{a}:{a+3}], v[{AF+8*sl+4*h}:{AF+8*sl+4*h+3}], v[{f}:{f+3}], '+(f'v[{a}:{a+3}]' if k else '0'))
        if kp+3<14: rd(kp+3)
    ST(3)
    A('s_barrier')
    for fr in range(4): A(f'ds_read_b128 v[{8+4*fr}:{11+4*fr}], v6 offset:{BPB+1024*fr}')
    for p in range(8):
        A(f'v_pk_fma_f32 v[{ACC+2*p}:{ACC+2*p+1}], v[122:123], v[{ACC+16+2*p}:{ACC+17+2*p}], v[{ACC+2*p}:{ACC+2*p+1}] op_sel_hi:[0,1,1]')
    for p in range(8): A(f'v_cvt_pk_bf16_f32 v{24+p}, v{ACC+2*p}, v{ACC+2*p+1}')
    A('''s_waitcnt lgkmcnt(0)
v_mfma_f32_16x16x32_bf16 v[32:35], v[8:11], v[24:27], 0
v_mfma_f32_16x16x32_bf16 v[36:39], v[16:19], v[24:27], 0
v_mfma_f32_16x16x32_bf16 v[32:35], v[12:15], v[28:31], v[32:35]
v_mfma_f32_16x16x32_bf16 v[36:39], v[20:23], v[28:31], v[36:39]''')
    for r in range(4):
        A(f'v_cvt_pk_bf16_f32 v{40+r}, v{32+r}, v{36+r}\nbuffer_store_dword v{40+r}, v7, s[20:23], s{32+r} offen sc1')
    ST(4)
    A('s_setprio 0')
    A(f'''L_prep:
s_mov_b32 s22, {WSSZ}
s_mov_b32 s23, 0x20000
s_mov_b32 s18, 1835008
s_mov_b32 s19, 0x20000
s_lshr_b32 s33, s28, 1
s_and_b32 s34, s28, 1
s_cmp_eq_u32 s33, 0
s_cselect_b32 s32, s26, s27
s_and_b32 s35, s24, 3
s_lshl_b32 s35, s35, 9
s_add_u32 s35, s35, s32
v_lshrrev_b32 v2, 4, v0
v_and_b32 v1, 15, v0
v_lshl_add_u32 v44, v2, 7, s35
s_mul_i32 s36, s34, 14
s_cmp_lt_u32 s24, 4
s_cbranch_scc1 L_dir
v_sub_u32 v44, 0x800, v44
v_and_b32 v44, 0x7ff, v44
s_sub_u32 s36, 42, s36
s_cmp_lg_u32 s26, 0
s_cselect_b32 s37, 1, 0
s_xor_b32 s33, s33, s37
L_dir:
v_lshrrev_b32 v45, 7, v44
v_min_u32 v46, 13, v1
v_add_u32 v46, s36, v46
s_lshl_b32 s37, s33, 6
v_lshl_add_u32 v47, v45, 2, s37
ds_read_b32 v48, v47 offset:{RS}
ds_read_b32 v49, v47 offset:{NB}
v_lshrrev_b32 v47, 1, v45
v_xor_b32 v47, v47, v46
v_and_b32 v47, 7, v47
v_and_b32 v50, 7, v45
v_lshl_add_u32 v47, v50, 3, v47
v_lshlrev_b32 v47, 4, v47
v_lshrrev_b32 v50, 3, v45
v_mul_u32_u24 v50, 7, v50
v_lshrrev_b32 v51, 3, v46
v_add_u32 v50, v50, v51
v_lshl_add_u32 v47, v50, 10, v47
s_mul_i32 s37, s33, 14336
v_add_u32 v47, s37, v47
ds_read_b128 v[52:55], v47
s_bfe_u32 s38, s32, 0x20004
v_lshlrev_b32 v6, 4, v0''')
    for sl in range(4):
        A(f'''s_add_u32 s37, s38, {sl}
s_and_b32 s37, s37, 3
s_lshl_b32 s{40+sl}, s37, 10
v_add_u32 v50, s{40+sl}, v6
ds_read_b128 v[{8+4*sl}:{11+4*sl}], v50 offset:{F2B}''')
    A(f'''s_and_b32 s37, s32, 15
s_lshl_b32 s37, s37, 4
s_lshl3_add_u32 s37, s34, s37
s_add_u32 s37, s37, s24
s_lshl_b32 s37, s37, 12
s_add_u32 s37, s37, {HB}
v_add_u32 v7, s37, v6
s_lshl_b32 s39, s24, 12
s_add_u32 s39, s39, {HS}
v_lshl_add_u32 v5, v0, 2, s39
v_mul_u32_u24 v3, 896, v44
v_lshl_add_u32 v3, v46, 4, v3
v_cmp_gt_u32 vcc, 14, v1
v_mov_b32 v50, 0x7fffffff
v_cndmask_b32 v3, v50, v3, vcc
s_mul_i32 s37, s24, 56
v_lshlrev_b32 v4, 11, v2
v_lshl_add_u32 v50, v1, 2, s37
v_sub_u32 v51, v4, v50
v_add_u32 v4, v4, v50
v_add_u32 v4, {YB+16}, v4
v_add_u32 v51, {YB+16*512+16+448}, v51
s_lshl_b32 s37, s24, 11
v_lshl_add_u32 v45, v0, 5, s37
v_cmp_ne_u32 vcc, 0, v46
s_waitcnt lgkmcnt(0)''')
    XV=56; GV=64
    for i in range(4):
        A(f'v_lshlrev_b32 v{XV+2*i}, 16, v{52+i}\nv_and_b32 v{XV+2*i+1}, 0xffff0000, v{52+i}')
    for i in range(8): A(f'v_fma_f32 v{GV+i}, v{XV+i}, v48, -v49')
    for i in range(8): A(f'v_mul_f32 v{72+i}, {hx(-1.4426950408889634)}, v{GV+i}')
    for i in range(8): A(f'v_exp_f32 v{72+i}, v{72+i}')
    for i in range(8): A(f'v_add_f32 v{72+i}, 1.0, v{72+i}')
    for i in range(8): A(f'v_rcp_f32 v{72+i}, v{72+i}')
    for i in range(8): A(f'v_mul_f32 v{GV+i}, v{GV+i}, v{72+i}')
    A(f'v_cndmask_b32 v{GV}, 0, v{GV}, vcc')
    A(f'''s_add_u32 s37, s28, 4
s_cmp_lg_u32 s24, s37
s_cbranch_scc0 L_poller
s_waitcnt vmcnt(0)''')
    ST(5)
    A('''s_barrier
s_barrier
s_branch L_go
L_poller:''')
    A(f'''v_mov_b32 v80, 0
ds_read_b128 v[84:87], v80 offset:{KM}
v_mov_b32 v82, s30
v_mov_b32 v83, s31
v_mov_b32 v81, 0
s_lshl_b32 s37, s28, 6
s_add_u32 s37, s37, s26
s_lshl_b32 s37, s37, 6
s_add_u32 s37, s37, {FLAG}
s_lshl_b32 s36, s34, 13
s_add_u32 s36, s36, {FLAG}
s_add_u32 s35, s36, 4096
v_lshlrev_b32 v96, 6, v0
s_waitcnt lgkmcnt(0)
v_max3_u32 v80, v84, v85, v86
v_max_u32 v80, v80, v87
s_mov_b32 s33, 0''')
    ST(5)
    A(f'''s_barrier
s_mov_b64 exec, 1
buffer_store_dwordx4 v[80:83], off, s[20:23], s37 sc1
s_mov_b64 exec, -1
L_poll:
buffer_load_dwordx4 v[84:87], v96, s[20:23], s36 offen sc1
buffer_load_dwordx4 v[88:91], v96, s[20:23], s35 offen sc1
s_add_u32 s33, s33, 1
s_cmp_gt_u32 s33, {SPIN}
s_cbranch_scc1 L_pollx
s_waitcnt vmcnt(0)
v_cmp_ne_u64 vcc, s[30:31], v[86:87]
v_cmp_ne_u64 s[44:45], s[30:31], v[90:91]
s_or_b64 vcc, vcc, s[44:45]
s_cbranch_scc1 L_poll
L_pollx:
s_barrier
L_go:''')
    ST(6)
    for sl in range(4):
        A(f's_add_u32 m0, s39, {1024*sl}\nbuffer_load_dwordx4 v7, s[20:23], s{40+sl} offen sc1 lds')
    A(f'''s_add_u32 s37, s28, 4
s_cmp_lg_u32 s24, s37
s_cbranch_scc1 L_noidx''')
    for p in ['quad_perm:[1,0,3,2]','quad_perm:[2,3,0,1]','row_half_mirror','row_mirror']:
        A(f'v_max_u32_dpp v84, v84, v84 {p} row_mask:0xf bank_mask:0xf')
    A(f'''v_readlane_b32 s46, v84, 0
v_readlane_b32 s47, v84, 16
v_readlane_b32 s48, v84, 32
v_readlane_b32 s49, v84, 48
s_max_u32 s46, s46, s47
s_max_u32 s48, s48, s49
s_max_u32 s46, s46, s48
s_and_b32 s46, s46, 0x7ff
v_mov_b32 v84, s46
v_mov_b32 v85, 0
ds_write_b32 v85, v84 offset:{IDXL}
L_noidx:''')
    for sl in range(4):
        A(f'''s_waitcnt vmcnt({3-sl})
ds_read2st64_b32 v[{24+4*sl}:{25+4*sl}], v5 offset0:{4*sl} offset1:{4*sl+1}
ds_read2st64_b32 v[{26+4*sl}:{27+4*sl}], v5 offset0:{4*sl+2} offset1:{4*sl+3}''')
        if sl>0:
            A(f's_waitcnt lgkmcnt(2)' if not stamps else 's_waitcnt lgkmcnt(0)')
            p=sl-1
            A(f'v_mfma_f32_16x16x32_bf16 v[40:43], v[{8+4*p}:{11+4*p}], v[{24+4*p}:{27+4*p}], '+('v[40:43]' if p else '0'))
    ST(7)
    A(f'''s_waitcnt lgkmcnt(0)
v_mfma_f32_16x16x32_bf16 v[40:43], v[20:23], v[36:39], v[40:43]
v_mov_b32 v80, 0
ds_write2st64_b32 v4, v40, v41 offset0:0 offset1:2
ds_write2st64_b32 v4, v42, v43 offset0:4 offset1:6
ds_write2st64_b32 v51, v40, v41 offset0:0 offset1:2
ds_write2st64_b32 v51, v42, v43 offset0:4 offset1:6
s_waitcnt lgkmcnt(0)
s_barrier
ds_read_b32 v81, v80 offset:{IDXL}
ds_read_b128 v[72:75], v45 offset:{YB+16}
ds_read_b128 v[76:79], v45 offset:{YB+32}
v_mov_b32 v50, 0x7fffffff
s_waitcnt lgkmcnt(1)
v_cmp_ne_u32 vcc, v81, v44''')
    for i in range(4): A(f'v_fmac_f32 v{XV+i}, v{72+i}, v{GV+i}')
    A('v_cndmask_b32 v3, v50, v3, vcc\ns_waitcnt lgkmcnt(0)')
    for i in range(4,8): A(f'v_fmac_f32 v{XV+i}, v{72+i}, v{GV+i}')
    for i in range(4): A(f'v_cvt_pk_bf16_f32 v{52+i}, v{XV+2*i}, v{XV+2*i+1}')
    A('buffer_store_dwordx4 v[52:55], v3, s[16:19], 0 offen')
    ST(8)
    if stamps: A('s_waitcnt vmcnt(0)'); ST(9); A('s_branch L_stamps')
    A('s_endpgm')
    A(f'''L_ffn:
s_cmp_ge_u32 s2, 312
s_cbranch_scc1 L_end
s_and_b32 s25, s2, 7
s_bfe_u32 s26, s2, 0x30003
s_mul_i32 s25, s25, 7
s_add_u32 s25, s25, s26
s_mov_b32 s22, {WSSZ}
s_mov_b32 s23, 0x20000
v_and_b32 v1, 15, v0
v_lshrrev_b32 v2, 4, v0
v_lshrrev_b32 v3, 3, v0
v_and_b32 v4, 7, v0
s_cmp_eq_u32 s24, 7
s_cbranch_scc1 L_fpoll
v_bfe_u32 v5, v0, 2, 1
v_lshl_add_u32 v6, v5, 2, v2
s_lshl_b32 s27, s24, 3
v_add_u32 v6, s27, v6
v_mul_u32_u24 v7, 8*3584, v6
v_and_b32 v8, 3, v0
v_lshl_add_u32 v7, v8, 4, v7
s_lshl_b32 s28, s25, 6
s_add_u32 s28, s28, 3584
v_add_u32 v10, s28, v7
v_mov_b32 v11, 0
v_cmp_lt_u32 vcc, 7, v1
v_mul_u32_u24 v14, 896, v3
v_lshl_add_u32 v14, v4, 4, v14
s_mul_i32 s28, s25, 32*896
s_lshl_b32 s29, s24, 7
s_add_u32 s28, s28, s29
v_add_u32 v14, s28, v14
s_mov_b32 s32, 3*3584
s_mov_b32 s33, 0
s_lshl_b32 s34, s24, 12
s_waitcnt lgkmcnt(0)
v_mov_b32 v12, s10
v_mov_b32 v13, s11
v_mov_b32 v15, s12
v_mov_b32 v16, s13
v_cndmask_b32 v12, v12, v15, vcc
v_cndmask_b32 v13, v13, v16, vcc
v_lshl_add_u64 v[10:11], v[10:11], 0, v[12:13]''')
    RW=32; FR=64; DF=16; AC=32
    for i in range(8):
        A(f'global_load_dwordx4 v[{RW+4*i}:{RW+4*i+3}], v[10:11], off offset:{(i%3-1)*3584}')
        if i%3==2: A('v_lshl_add_u64 v[10:11], v[10:11], 0, s[32:33]')
    for a in range(4):
        A(f's_add_u32 m0, s34, {1024*a}\nglobal_load_lds_dwordx4 v14, s[14:15]')
        if a<3: A(f'v_add_u32 v14, 8*896, v14')
    ST(1)
    A(f'''s_mov_b32 s36, 0x05040100
s_mov_b32 s37, 0x07060302
v_lshlrev_b32 v9, 4, v6
v_lshrrev_b32 v12, 2, v1
v_lshlrev_b32 v12, 7, v12
v_lshl_add_u32 v12, v8, 3, v12
v_lshl_add_u32 v12, v2, 10, v12
v_add_u32 v12, s34, v12
v_lshrrev_b32 v13, 3, v1
v_lshl_add_u32 v13, v13, 2, v8
v_mul_u32_u24 v13, 640, v13
v_lshl_add_u32 v13, v5, 2, v13
v_add_u32 v13, s27, v13
v_add_u32 v13, {PB}, v13
v_cmp_eq_u32 s[38:39], v5, v2
v_mul_u32_u24 v15, 80, v0
s_lshl_b32 s28, s24, 6
v_and_b32 v10, 31, v0
v_lshl_add_u32 v10, v10, 1, s28
v_lshl_add_u32 v11, v2, 4, s28
v_add_u32 v7, s27, v3
v_mul_u32_u24 v7, 7168, v7
v_lshl_add_u32 v7, v4, 4, v7
s_lshl_b32 s40, s25, 7
s_add_u32 s40, s40, {PART}
s_mul_i32 s41, s25, 7168
s_lshl_b32 s29, s24, 10
s_add_u32 s41, s41, s29
s_add_u32 s41, s41, {PART}
v_lshlrev_b32 v14, 4, v0
s_lshl_b32 s29, s24, 2
v_lshl_add_u32 v3, v4, 5, s29
v_mov_b32 v96, 0''')
    for ip in range(4):
        A(f's_waitcnt vmcnt({10-2*ip})')
        for dw in range(4):
            A(f'v_perm_b32 v{FR+8*dw+ip}, v{RW+8*ip+4+dw}, v{RW+8*ip+dw}, s36\nv_perm_b32 v{FR+8*dw+4+ip}, v{RW+8*ip+4+dw}, v{RW+8*ip+dw}, s37')
    ST(2)
    A('s_waitcnt vmcnt(0)')
    for t in range(4):
        A(f'ds_read_b64_tr_b16 v[{DF+4*t}:{DF+4*t+1}], v12 offset:{32*t}\nds_read_b64_tr_b16 v[{DF+4*t+2}:{DF+4*t+3}], v12 offset:{32*t+512}')
    ST(3)
    A(f'''s_waitcnt lgkmcnt(0)
s_barrier
ds_read_b128 v[100:103], v96 offset:{INFO}
ds_read_b64 v[106:107], v96 offset:{INFO+16}
s_waitcnt lgkmcnt(0)
v_add_u32 v9, v9, v100
buffer_load_dwordx4 v[108:111], v9, s[4:7], 0 offen''')
    ST(4)
    A('s_waitcnt vmcnt(0)')
    for i in range(4):
        A(f'''v_lshlrev_b32 v112, 16, v{108+i}
v_and_b32 v113, 0xffff0000, v{108+i}
v_fma_f32 v112, v112, v101, -v102
v_fma_f32 v113, v113, v101, -v102
v_cvt_pk_bf16_f32 v{108+i}, v112, v113''')
    for c in range(8):
        A(f'v_mfma_f32_16x16x32_bf16 v[{AC+4*c}:{AC+4*c+3}], v[108:111], v[{FR+4*c}:{FR+4*c+3}], 0')
    A('s_mov_b64 exec, s[38:39]')
    for c in range(0,8,2):
        A(f'ds_write2_b32 v13, v{AC+4*c}, v{AC+4*c+4} offset0:{20*c} offset1:{20*c+20}')
    A(f'''s_mov_b64 exec, -1
s_waitcnt lgkmcnt(0)''')
    ST(5)
    A(f'''s_barrier
ds_read_b128 v[64:67], v15 offset:{PB}
ds_read_b128 v[68:71], v15 offset:{PB+16}
ds_read_b128 v[72:75], v15 offset:{PB+32}
ds_read_b64 v[76:77], v15 offset:{PB+48}
s_waitcnt lgkmcnt(0)
v_pk_add_f32 v[64:65], v[64:65], v[66:67]
v_pk_add_f32 v[68:69], v[68:69], v[70:71]
v_pk_add_f32 v[72:73], v[72:73], v[74:75]
v_pk_add_f32 v[64:65], v[64:65], v[76:77]
v_pk_add_f32 v[68:69], v[68:69], v[72:73]
v_pk_add_f32 v[64:65], v[64:65], v[68:69]
v_add_f32 v66, v64, v65
v_add_f32 v67, v64, v65
v_permlane32_swap_b32 v66, v67
v_mul_f32 v68, {hx(-1.4426950408889634)}, v66
v_exp_f32 v68, v68
v_mul_f32 v67, v66, v67
v_add_f32 v68, 1.0, v68
v_rcp_f32 v68, v68
v_cmp_eq_u32 s[42:43], 1, v2
v_mul_f32 v67, v67, v68
v_cvt_pk_bf16_f32 v67, v67, v67
ds_write_b16 v10, v67 offset:{HHB}
ds_read_b128 v[68:71], v11 offset:{HHB}
v_cmp_eq_u32 s[44:45], 2, v2
v_cmp_eq_u32 vcc, 3, v2
v_mov_b32 v105, 0
s_waitcnt lgkmcnt(0)''')
    for t in range(4):
        A(f'v_mfma_f32_16x16x32_bf16 v[{AC+4*t}:{AC+4*t+3}], v[68:71], v[{DF+4*t}:{DF+4*t+3}], 0')
    A(f'''v_cndmask_b32 v104, v{AC}, v{AC+4}, s[42:43]
v_cndmask_b32 v104, v104, v{AC+8}, s[44:45]
v_cndmask_b32 v104, v104, v{AC+12}, vcc
buffer_store_dwordx4 v[104:107], v7, s[20:23], s40 offen sc1
s_mov_b32 s33, 0''')
    ST(6)
    A(f'''L_ppoll:
buffer_load_dwordx4 v[64:67], v14, s[20:23], s41 offen sc1
s_add_u32 s33, s33, 1
s_cmp_gt_u32 s33, {SPIN}
s_cbranch_scc1 L_ppollx
s_waitcnt vmcnt(0)
v_cmp_ne_u64 vcc, v[66:67], v[106:107]
s_cbranch_vccnz L_ppoll
L_ppollx:''')
    ST(7)
    A(f'''v_add_f32_dpp v64, v64, v64 row_ror:8 row_mask:0xf bank_mask:0xf
v_mov_b32 v65, v64
v_permlane16_swap_b32 v64, v65
v_add_f32 v66, v64, v65
v_add_f32 v67, v64, v65
v_permlane32_swap_b32 v66, v67
v_add_f32 v64, v66, v67
ds_write_b32 v3, v64 offset:{YS}
s_waitcnt lgkmcnt(0)
s_barrier''')
    ST(8)
    if stamps: ST(9); A('s_branch L_stamps')
    A('s_endpgm')
    A(f'''L_fpoll:
s_waitcnt lgkmcnt(0)
s_load_dwordx2 s[30:31], s[20:21], 0
s_mov_b32 s18, 1835008
s_mov_b32 s19, 0x20000
v_lshlrev_b32 v5, 6, v0
s_mov_b32 s36, {KEY}
s_mov_b32 s37, {KEY+4096}
s_mov_b32 s38, {KEY+8192}
s_mov_b32 s39, {KEY+12288}
s_lshl_b32 s27, s25, 3
v_add_u32 v6, s27, v4
v_sub_u32 v7, 448, v6
s_cmp_lt_u32 s25, 28
s_cselect_b64 vcc, -1, 0
v_cndmask_b32 v7, v7, v6, vcc
v_mul_u32_u24 v8, 4682, v7
v_lshrrev_b32 v8, 16, v8
v_min_u32 v8, 15, v8
v_mul_u32_u24 v9, 14, v8
v_sub_u32 v9, v7, v9
v_lshlrev_b32 v9, 2, v9
v_lshl_add_u32 v9, v8, 12, v9
v_lshl_add_u32 v9, v3, 6, v9
v_readlane_b32 s40, v8, 0
v_readlane_b32 s41, v8, 7
s_lshr_b32 s40, s40, 2
s_lshr_b32 s41, s41, 2
s_lshl_b32 s40, s40, 12
s_lshl_b32 s41, s41, 12
s_add_u32 s40, s40, {FLAG}
s_add_u32 s41, s41, {FLAG}
s_mov_b32 s33, 0
s_waitcnt lgkmcnt(0)
s_add_u32 s30, s30, 0x9e3779b9
s_add_u32 s31, s31, 0x7f4a7c15''')
    ST(1)
    A(f'''L_kpoll:
buffer_load_dwordx4 v[16:19], v5, s[20:23], s36 offen sc1
buffer_load_dwordx4 v[20:23], v5, s[20:23], s37 offen sc1
buffer_load_dwordx4 v[24:27], v5, s[20:23], s38 offen sc1
buffer_load_dwordx4 v[28:31], v5, s[20:23], s39 offen sc1
s_add_u32 s33, s33, 1
s_cmp_gt_u32 s33, {SPIN}
s_cbranch_scc1 L_kpollx
s_waitcnt vmcnt(0)
v_cmp_ne_u64 vcc, s[30:31], v[18:19]
v_cmp_ne_u64 s[42:43], s[30:31], v[22:23]
v_cmp_ne_u64 s[44:45], s[30:31], v[26:27]
v_cmp_ne_u64 s[46:47], s[30:31], v[30:31]
s_or_b64 vcc, vcc, s[42:43]
s_or_b64 s[44:45], s[44:45], s[46:47]
s_or_b64 vcc, vcc, s[44:45]
s_cbranch_scc1 L_kpoll
L_kpollx:''')
    ST(2)
    A(f'''v_max3_u32 v32, v16, v20, v24
v_max_u32 v32, v32, v28
v_cmp_eq_u32 vcc, v32, v20
v_cmp_eq_u32 s[42:43], v32, v24
v_cmp_eq_u32 s[44:45], v32, v28
v_max_u32_dpp v33, v32, v32 quad_perm:[1,0,3,2] row_mask:0xf bank_mask:0xf
v_cndmask_b32 v17, v17, v21, vcc
v_cndmask_b32 v17, v17, v25, s[42:43]
v_max_u32_dpp v33, v33, v33 quad_perm:[2,3,0,1] row_mask:0xf bank_mask:0xf
v_cndmask_b32 v17, v17, v29, s[44:45]
v_max_u32_dpp v33, v33, v33 row_half_mirror row_mask:0xf bank_mask:0xf
v_max_u32_dpp v33, v33, v33 row_mirror row_mask:0xf bank_mask:0xf
v_readlane_b32 s46, v33, 0
v_readlane_b32 s47, v33, 16
v_readlane_b32 s48, v33, 32
v_readlane_b32 s49, v33, 48
s_max_u32 s46, s46, s47
s_max_u32 s48, s48, s49
s_max_u32 s46, s46, s48
v_cmp_eq_u32 vcc, s46, v32
s_ff1_i32_b64 s47, vcc
v_readlane_b32 s47, v17, s47
s_and_b32 s48, s46, 0x7ff
s_mul_i32 s49, s48, 896
s_and_b32 s50, s47, 0xffff0000
s_lshl_b32 s51, s47, 16
v_rcp_f32 v37, s50
v_mov_b32 v36, s49
v_mov_b32 v40, s30
v_mov_b32 v41, s31
v_mov_b32 v42, 0
v_mul_f32 v38, s51, v37
ds_write_b128 v42, v[36:39] offset:{INFO}
ds_write_b64 v42, v[40:41] offset:{INFO+16}
s_waitcnt lgkmcnt(0)''')
    ST(3)
    A(f'''s_barrier
v_lshl_add_u32 v10, v6, 1, s49
buffer_load_ushort v11, v10, s[4:7], 0 offen
s_sub_u32 s52, 0x800, s48
s_and_b32 s52, s52, 0x7ff
s_cmp_lt_u32 s25, 28
s_cselect_b32 s52, s48, s52
s_lshr_b32 s53, s52, 4
s_and_b32 s52, s52, 15
s_lshl_b32 s52, s52, 16
s_add_u32 s52, s52, {HB}
v_cvt_f32_u32 v12, s53
v_cvt_f32_u32 v13, v3
v_mul_f32 v12, {hx(1/128)}, v12
v_mul_f32 v13, v13, v12
v_mul_f32 v12, {hx(8.0)}, v12
s_bitcmp1_b32 s53, 0
s_cselect_b32 s53, -1.0, 1.0
v_mov_b32 v14, s53
v_cmp_eq_u32 vcc, 0, v3''')
    for i in range(8):
        A('v_cos_f32 v16, v13\nv_sin_f32 v17, v13')
        if i<7: A('v_add_f32 v13, v13, v12')
        if i==0: A('v_cndmask_b32 v17, v17, v14, vcc')
        A(f'v_cvt_pk_bf16_f32 v{48+i}, v16, v17')
    A(f'''s_andn2_b32 s46, s46, 0x7ff
s_ashr_i32 s47, s46, 31
s_not_b32 s47, s47
s_or_b32 s47, s47, 0x80000000
s_xor_b32 s46, s46, s47
v_mov_b32 v15, s46
v_mul_f32 v15, {hx(-1.4426950408889634)}, v15
v_exp_f32 v15, v15
v_add_f32 v15, 1.0, v15
v_rcp_f32 v15, v15
v_lshlrev_b32 v43, 5, v4
s_mov_b32 s33, 0
s_barrier''')
    ST(4)
    A(f'''L_hpoll:
buffer_load_dwordx4 v[16:19], v5, s[20:23], s40 offen sc1
buffer_load_dwordx4 v[20:23], v5, s[20:23], s41 offen sc1
s_add_u32 s33, s33, 1
s_cmp_gt_u32 s33, {SPIN}
s_cbranch_scc1 L_hpollx
s_waitcnt vmcnt(0)
v_cmp_ne_u64 vcc, s[30:31], v[18:19]
v_cmp_ne_u64 s[42:43], s[30:31], v[22:23]
s_or_b64 vcc, vcc, s[42:43]
s_cbranch_scc1 L_hpoll
L_hpollx:''')
    ST(5)
    for i in range(8): A(f'buffer_load_dword v{56+i}, v9, s[20:23], s52 offen offset:{512*i} sc1')
    A(f'''v_mov_b32 v44, 0
v_lshlrev_b32 v11, 16, v11
v_fma_f32 v45, v11, v37, -v38
v_cmp_ne_u32 vcc, 0, v6
s_waitcnt vmcnt(0)''')
    ST(6)
    for i in range(8): A(f'v_dot2c_f32_bf16 v44, v{48+i}, v{56+i}')
    A(f'''v_add_f32_dpp v44, v44, v44 row_ror:8 row_mask:0xf bank_mask:0xf
v_mov_b32 v46, v44
v_permlane16_swap_b32 v44, v46
v_add_f32 v16, v44, v46
v_add_f32 v17, v44, v46
v_permlane32_swap_b32 v16, v17
v_add_f32 v44, v16, v17
v_cndmask_b32 v44, 0, v44, vcc''')
    ST(7)
    A(f'''s_barrier
ds_read_b128 v[16:19], v43 offset:{YS}
ds_read_b96 v[20:22], v43 offset:{YS+16}
s_waitcnt lgkmcnt(0)
v_pk_add_f32 v[16:17], v[16:17], v[18:19]
v_add_f32 v20, v20, v21
v_add_f32 v16, v16, v17
v_add_f32 v20, v20, v22
v_add_f32 v16, v16, v20
v_fmac_f32 v45, v16, v15
v_mul_f32 v16, {hx(-1.4426950408889634)}, v45
v_exp_f32 v16, v16
v_mul_f32 v45, v45, v44
v_add_f32 v16, 1.0, v16
v_rcp_f32 v16, v16
s_mov_b64 exec, 0xff
v_fmac_f32 v11, v45, v16
v_cvt_pk_bf16_f32 v11, v11, v11
buffer_store_short v11, v10, s[16:19], 0 offen
s_cmp_lg_u32 s25, 0
s_cbranch_scc1 L_noctl
s_mov_b64 exec, 1
buffer_store_dwordx2 v[40:41], off, s[20:23], 0
L_noctl:''')
    ST(8)
    if stamps:
        A('s_waitcnt vmcnt(0)'); ST(9)
        A(f'''L_stamps:
s_waitcnt lgkmcnt(0)''')
        if amp:
            wg,wave,a,b,k=amp
            A(f'''s_cmp_lg_u32 s2, {wg}
s_cbranch_scc1 L_end
s_cmp_lg_u32 s24, {wave}
s_cbranch_scc1 L_end
s_sub_u32 s40, s{64+2*b}, s{64+2*a}
s_min_u32 s40, s40, 5000
s_mul_i32 s40, s40, {k}
L_amp:
s_memrealtime s[42:43]
s_waitcnt lgkmcnt(0)
s_sub_u32 s42, s42, s82
s_cmp_lt_u32 s42, s40
s_cbranch_scc1 L_amp
s_branch L_end''')
        A(f'''
s_mov_b64 exec, 1
s_lshl3_add_u32 s3, s2, s24
s_lshl_b32 s3, s3, 6
s_add_u32 s3, s3, {STAMPS}''')
        for i in range(10): A(f'v_mov_b32 v{4+i}, s{64+2*i}')
        A('v_mov_b32 v14, s33\nv_mov_b32 v15, 0')
        A('buffer_store_dwordx4 v[4:7], off, s[20:23], s3\nbuffer_store_dwordx4 v[8:11], off, s[20:23], s3 offset:16\nbuffer_store_dwordx4 v[12:15], off, s[20:23], s3 offset:32')
    A('L_end:\ns_endpgm')
    A(f'''.section .rodata,"a"
.p2align 6
.amdhsa_kernel {NAME}
.amdhsa_next_free_vgpr 128
.amdhsa_next_free_sgpr 96
.amdhsa_accum_offset 128
.amdhsa_group_segment_fixed_size 0
.amdhsa_kernarg_size 104
.amdhsa_user_sgpr_count 2
.amdhsa_user_sgpr_kernarg_segment_ptr 1
.amdhsa_system_sgpr_workgroup_id_x 1
.end_amdhsa_kernel''')
    return HEADER+f'; @launch grid=(312,1,1) block=(512,1,1) lds={LDS}\n'+A.text()
if __name__=='__main__':
    open('k1.s','w').write(gen(False))
    open('k1_st.s','w').write(gen(True))
    open('amp0.s','w').write(gen(True,(256,7,0,9,0)))
    open('amp1.s','w').write(gen(True,(256,7,0,9,10)))
    open('amp2.s','w').write(gen(True,(100,4,0,1,10)))
    open('amp3.s','w').write(gen(True,(100,4,0,2,10)))
    open('amp4.s','w').write(gen(True,(100,0,0,2,10)))
    open('amp5.s','w').write(gen(True,(100,0,0,6,10)))
```

```python
import sys, struct
from asmlib import Asm
NAME="recurrent_scan__spectral_fnet__moe_arch_mod__prompt_kernel"
def f2u(x): return struct.unpack('I',struct.pack('f',x))[0]
def hx(x): return '0x%08x'%f2u(x)
KEY=0x1000; FLAG=0x8000; PART=0x10000; HB=0x80000; STAMPS=0x200000; WSSZ=0x400000
XB=0; YB=0; HS=28672; F2B=HS; BPB=HS+4096; WRB=HS+8192; MISC=HS+32768
RS=MISC; NB=MISC+128; KM=MISC+256; IDXL=MISC+272
LDS=MISC+512
DNB=0; PB=28672; HHB=PB+5120; INFO=HHB+512; YS=INFO+64
SPIN=1<<16
HEADER=open('recurrent_scan__spectral_fnet__moe_arch_mod__prompt.s.ref').read().split('; Override')[0]
def gen(stamps=False, amp=None, probe=None):
    A=Asm()
    def ST(i):
        if stamps: A(f's_memrealtime s[{64+2*i}:{65+2*i}]')
    A(f'''.amdgcn_target "amdgcn-amd-amdhsa--gfx950"
.text
.globl {NAME}
.p2align 8
.type {NAME},@function
{NAME}:''')
    ST(0)
    A('''s_load_dwordx2 s[4:5], s[0:1], 0
s_load_dwordx8 s[8:15], s[0:1], 48
s_load_dwordx2 s[16:17], s[0:1], 80
s_load_dwordx2 s[20:21], s[0:1], 96
v_lshrrev_b32 v1, 6, v0
s_mov_b32 s6, 1835008
s_mov_b32 s7, 0x20000
v_readfirstlane_b32 s24, v1
v_and_b32 v0, 63, v0
s_cmp_ge_u32 s2, 256
s_cbranch_scc1 L_ffn
s_bfe_u32 s28, s2, 0x20003
s_and_b32 s25, s2, 7
s_sub_u32 s26, 16, s25
s_cmp_eq_u32 s25, 0
s_cselect_b32 s26, 8, s26
s_bitcmp1_b32 s2, 5
s_cselect_b32 s26, s26, s25
s_lshr_b32 s27, s2, 6
s_lshl4_add_u32 s26, s27, s26
s_sub_u32 s27, 128, s26
s_cmp_eq_u32 s26, 0
s_cselect_b32 s27, 64, s27
s_cmp_lt_u32 s24, 4
s_cbranch_scc1 L_mfma''')
    A(f'''s_sub_u32 s29, s24, 4
s_bitcmp1_b32 s24, 1
s_cselect_b32 s32, s27, s26
s_and_b32 s33, s24, 1
s_lshl_b32 s34, s33, 10
s_add_u32 s32, s32, s34
v_lshrrev_b32 v1, 3, v0
v_lshl_add_u32 v2, v1, 7, s32
v_mul_u32_u24 v3, 896, v2
v_lshrrev_b32 v4, 4, v0
s_lshl_b32 s34, s33, 2
v_xor_b32 v5, v0, v4
v_xor_b32 v5, s34, v5
v_and_b32 v5, 7, v5
v_lshlrev_b32 v5, 4, v5
v_add_u32 v3, v5, v3
v_lshlrev_b32 v6, 4, v0
s_mul_i32 s35, s29, 7168
s_lshl_b32 s36, s28, 8
s_mov_b32 s37, 7
s_lshl_b32 s38, s29, 10
s_add_u32 s38, s38, {WRB}
s_mov_b32 m0, s38
s_mov_b32 exec_hi, 0x00ffffff
s_waitcnt lgkmcnt(0)
global_load_lds_dwordx4 v6, s[8:9]
s_mov_b32 exec_hi, -1
L_xl:
s_lshl3_add_u32 m0, s36, s35
s_sub_u32 s37, s37, 1
buffer_load_dwordx4 v3, s[4:7], s36 offen lds
s_add_u32 s36, s36, 128
s_cmp_eq_u32 s36, 896
s_cselect_b32 s36, 0, s36
s_cmp_lg_u32 s37, 0
s_cbranch_scc1 L_xl''')
    ST(1)
    A(f'''s_cmp_lg_u32 s29, s28
s_cbranch_scc1 L_nononce
s_load_dwordx2 s[30:31], s[20:21], 0
L_nononce:''')
    A(f'''s_lshr_b32 s39, s2, 3
s_cmp_ge_u32 s29, 2
s_cbranch_scc1 L_pfd
s_cmp_eq_u32 s29, 0
s_cselect_b32 s40, s10, s12
s_cselect_b32 s41, s11, s13
s_mul_i32 s42, s39, 14*3584
s_mul_i32 s43, s25, 448
s_andn2_b32 s43, s43, 127
s_add_u32 s42, s42, s43
v_lshrrev_b32 v7, 2, v0
v_min_u32 v7, 13, v7
v_mul_u32_u24 v7, 3584, v7
v_and_b32 v8, 3, v0
v_lshl_add_u32 v7, v8, 7, v7
s_branch L_pfgo
L_pfd:
s_mov_b32 s40, s14
s_mov_b32 s41, s15
s_mul_i32 s42, s25, 224*896
s_mul_i32 s43, s39, 49*128
s_add_u32 s42, s42, s43
s_mul_i32 s43, s33, 24*128
s_add_u32 s42, s42, s43
v_min_u32 v7, 24, v0
v_lshlrev_b32 v7, 7, v7
L_pfgo:
v_add_u32 v7, s42, v7
global_load_dword v127, v7, s[40:41]''')
    A(f'''s_bitcmp1_b32 s28, 1
s_cselect_b32 s44, s27, s26
s_lshr_b32 s45, s44, 4
v_and_b32 v10, 15, v0
v_lshl_add_u32 v11, v10, 3, s45
v_cvt_f32_u32 v11, v11
v_mul_f32 v11, {hx(1/128)}, v11
s_lshl_b32 s46, s29, 4
v_add_u32 v12, s46, v4
v_cmp_eq_u32 vcc, 0, v12
v_cvt_f32_u32 v12, v12
v_mul_f32 v13, v11, v12
v_mul_f32 v14, 4.0, v11
s_bitcmp1_b32 s45, 0
s_cselect_b32 s46, -1.0, 1.0
v_mov_b32 v15, s46''')
    for jq in range(4):
        A(f'v_cos_f32 v16, v13\nv_sin_f32 v17, v13')
        if jq<3: A('v_add_f32 v13, v13, v14')
        if jq==0: A('v_cndmask_b32 v17, v17, v15, vcc')
        A(f'v_cvt_pk_bf16_f32 v{20+jq}, v16, v17')
    A(f'''s_lshl_b32 s46, s29, 10
v_add_u32 v16, s46, v6
ds_write_b128 v16, v[20:23] offset:{F2B}''')
    A(f'''v_and_b32 v12, 1, v4
v_lshl_add_u32 v13, v12, 9, s32
v_mul_u32_u24 v13, v13, v10
v_cvt_f32_u32 v13, v13
v_cvt_f32_u32 v14, v10
v_mul_f32 v14, {hx(1/16)}, v14
s_mov_b32 s46, {hx(0.25)}
s_bitcmp1_b32 s24, 1
s_cselect_b32 s46, {hx(-0.25)}, s46
s_cselect_b32 s47, 0, 1.0
s_cselect_b32 s48, 1.0, 0
s_cmp_eq_u32 s26, 0
s_cselect_b32 s46, 0, s46
s_cselect_b32 s47, s47, 1.0
s_cselect_b32 s48, s48, 1.0
v_cmp_lt_u32 vcc, 31, v0
v_mov_b32 v15, s46
v_mov_b32 v16, s47
v_mov_b32 v17, s48
v_cndmask_b32 v15, 0, v15, vcc
v_cndmask_b32 v19, v16, v17, vcc
v_fmamk_f32 v13, v13, {hx(1/2048)}, v15''')
    for i in range(4):
        A(f'v_cos_f32 v{24+i}, v13\nv_sin_f32 v{28+i}, v13')
        if i<3: A('v_add_f32 v13, v13, v14')
    A(f'''v_lshrrev_b32 v15, 5, v0
v_and_b32 v16, 31, v0
v_lshlrev_b32 v16, 4, v16
v_lshl_add_u32 v16, v15, 11, v16
s_lshl_b32 s46, s29, 9
v_add_u32 v18, s46, v16
s_lshl_b32 s46, s29, 5
v_lshl_add_u32 v17, v12, 4, s46
v_lshl_add_u32 v16, v1, 2, s46''')
    A(f'v_add_u32 v5, s38, v5\nv_add_u32 v6, s35, v6\ns_waitcnt vmcnt(8)')
    for c in range(7): A(f'ds_read_b128 v[{64+4*c}:{67+4*c}], v5 offset:{128*c}')
    A('v_mov_b32 v20, 0\nv_mov_b32 v21, 0\nv_mov_b32 v22, 0\nv_mov_b32 v23, 0\ns_mov_b32 s46, 0x3f803f80\ns_waitcnt lgkmcnt(0)')
    for k in range(28): A(f'v_dot2c_f32_bf16 v23, s46, v{64+k}')
    A(f'''s_add_u32 s30, s30, 0x9e3779b9
s_add_u32 s31, s31, 0x7f4a7c15
s_waitcnt vmcnt(1)''')
    ST(2)
    A('s_barrier')
    for c in range(7): A(f'ds_read_b128 v[{32+4*c}:{35+4*c}], v6 offset:{1024*c}')
    for c in range(7):
        A(f's_waitcnt lgkmcnt({6-c})' if not stamps else 's_waitcnt lgkmcnt(0)')
        for k in range(4*c,4*c+4):
            A(f'v_dot2c_f32_bf16 v20, s46, v{32+k}\nv_dot2c_f32_bf16 v21, v{32+k}, v{32+k}\nv_dot2c_f32_bf16 v22, v{64+k}, v{32+k}')
    for p in ['quad_perm:[1,0,3,2]','quad_perm:[2,3,0,1]','row_half_mirror']:
        for r in [23,20,21,22]: A(f'v_add_f32_dpp v{r}, v{r}, v{r} {p} row_mask:0xf bank_mask:0xf')
    A(f'''v_mul_f32 v20, {hx(1/448)}, v20
v_mul_f32_e64 v32, -v20, v20
v_fmamk_f32 v21, v21, {hx(1/448)}, v32
v_max_f32 v21, 0, v21
v_cvt_pk_bf16_f32 v21, v21, v21
v_and_b32 v21, 0xffff0000, v21
v_add_f32 v21, {hx(1e-5)}, v21
v_cvt_pk_bf16_f32 v21, v21, v21
v_and_b32 v21, 0xffff0000, v21
v_sqrt_f32 v21, v21
v_cvt_pk_bf16_f32 v37, v20, v21
v_and_b32 v21, 0xffff0000, v37
v_lshlrev_b32 v20, 16, v37
v_rcp_f32 v21, v21
v_fma_f32 v22, -v20, v23, v22
v_mul_f32 v20, v20, v21
ds_write_b32 v16, v21 offset:{RS}
ds_write_b32 v16, v20 offset:{NB}
ds_read_b128 v[40:43], v17 offset:{RS}
v_mul_f32 v22, v22, v21
v_ashrrev_i32 v32, 31, v22
v_or_b32 v32, 0x80000000, v32
v_xor_b32 v22, v22, v32
v_and_b32 v22, 0xfffff800, v22
v_or_b32 v36, v22, v2
v_max_u32_dpp v33, v36, v36 row_ror:8 row_mask:0xf bank_mask:0xf
v_mov_b32 v38, s30
v_mov_b32 v39, s31
v_readlane_b32 s46, v33, 0
v_readlane_b32 s47, v33, 16
v_readlane_b32 s48, v33, 32
v_readlane_b32 s49, v33, 48
s_max_u32 s46, s46, s47
s_max_u32 s48, s48, s49
s_max_u32 s46, s46, s48
s_cmp_lg_u32 s29, s28
s_cbranch_scc1 L_nokey
s_mov_b32 s22, {WSSZ}
s_mov_b32 s23, 0x20000
s_lshl_b32 s47, s2, 6
s_add_u32 s47, s47, {KEY}
v_cmp_eq_u32 vcc, s46, v36
s_ff1_i32_b64 s48, vcc
s_lshl_b64 exec, 1, s48
buffer_store_dwordx4 v[36:39], off, s[20:23], s47 sc1
s_mov_b64 exec, -1
L_nokey:''')
    ST(3)
    A(f'''s_lshl_b32 s47, s29, 2
v_mov_b32 v34, s47
v_mov_b32 v35, s46
ds_write_b32 v34, v35 offset:{KM}
s_waitcnt lgkmcnt(0)''')
    for i in range(4): A(f'v_mul_f32 v{40+i}, v19, v{40+i}')
    for i in range(4): A(f'v_mul_f32 v{24+i}, v{24+i}, v{40+i}\nv_mul_f32 v{28+i}, v{28+i}, v{40+i}')
    A(f'''v_cvt_pk_bf16_f32 v44, v24, v25
v_cvt_pk_bf16_f32 v45, v26, v27
v_cvt_pk_bf16_f32 v46, -v28, -v29
v_cvt_pk_bf16_f32 v47, -v30, -v31
ds_write_b128 v18, v[44:47] offset:{BPB}
s_waitcnt lgkmcnt(0)''')
    ST(4)
    A('s_barrier\ns_branch L_prep')
    CF=8; SF=36; ACC=64; AF=96
    A('L_mfma:')
    ST(1)
    A(f'''s_setprio 1
s_lshl2_add_u32 s29, s28, s24
s_mul_i32 s32, s29, 14
v_and_b32 v1, 15, v0
v_lshrrev_b32 v2, 4, v0
v_add_u32 v3, s32, v1
v_mul_u32_u24 v4, 9586980, v3
v_mul_u32_u24 v5, 37449, v3
v_add_u32 v5, 0x8000, v5
v_lshrrev_b32 v5, 16, v5
v_add_u32 v4, v4, v5
v_lshl_add_u32 v5, v2, 3, 3
v_mul_lo_u32 v5, v5, v4
v_lshlrev_b32 v6, 5, v4
v_cvt_f32_u32 v4, v4
v_mul_f32 v4, {hx(2.0**-32)}, v4
v_cos_f32 v120, v4
v_lshlrev_b32 v122, 31, v3
v_or_b32 v122, 1.0, v122
v_add_f32 v120, v120, v120''')
    T=64
    for k in range(7):
        A(f'''v_cvt_f32_i32 v80, v5
v_add_u32 v5, v5, v6
v_mul_f32 v80, {hx(2.0**-32)}, v80
v_add_f32 v81, v80, v4
v_cos_f32 v{T+6}, v80
v_sin_f32 v{T+7}, v80
v_cos_f32 v{T+8}, v81
v_sin_f32 v{T+9}, v81''')
        pk=lambda d,a,b: f'v_pk_fma_f32 v[{T+2*d}:{T+2*d+1}], v[120:121], v[{T+2*a}:{T+2*a+1}], v[{T+2*b}:{T+2*b+1}] op_sel_hi:[0,1,1] neg_lo:[0,0,1] neg_hi:[0,0,1]'
        cv=lambda p: f'v_cvt_pk_bf16_f32 v{CF+4*k+p}, v{T+4*p}, v{T+4*p+2}\nv_cvt_pk_bf16_f32 v{SF+4*k+p}, v{T+4*p+1}, v{T+4*p+3}'
        A(pk(2,3,4)); A(pk(5,4,3)); A(pk(1,2,3)); A(pk(6,5,4)); A(pk(0,1,2)); A(pk(7,6,5))
        A(cv(1)); A(cv(2)); A(cv(0)); A(cv(3))
    A(f'''v_lshrrev_b32 v4, 1, v1
v_xor_b32 v4, v4, v2
v_and_b32 v5, 7, v1
v_lshl_add_u32 v4, v5, 3, v4
v_lshlrev_b32 v4, 4, v4
v_lshrrev_b32 v5, 3, v1
v_mul_u32_u24 v5, 7168, v5
v_add_u32 v4, v4, v5
v_xor_b32 v5, 64, v4
v_lshlrev_b32 v6, 4, v0
v_lshlrev_b32 v7, 18, v2
v_lshl_add_u32 v7, v1, 2, v7
s_lshl_b32 s32, s29, 12
s_lshl_b32 s33, s26, 6
s_add_u32 s32, s32, s33
s_add_u32 s32, s32, {HB}
s_add_u32 s33, s32, 0x10000
s_add_u32 s34, s32, 0x20000
s_add_u32 s35, s32, 0x30000
s_mov_b32 s22, {WSSZ}
s_mov_b32 s23, 0x20000
s_waitcnt lgkmcnt(0)''')
    ST(2)
    A('s_barrier')
    def rd(kp):
        sl=kp%3
        for h in range(2):
            A(f'ds_read_b128 v[{AF+8*sl+4*h}:{AF+8*sl+4*h+3}], v{4+(kp&1)} offset:{h*14336+(kp>>1)*1024}')
    rd(0); rd(1); rd(2)
    if stamps: A('s_waitcnt lgkmcnt(0)')
    for kp in range(14):
        hh=kp//7; k=kp%7; sl=kp%3
        out=min(13,kp+2)-kp
        for h in range(2):
            A(f's_waitcnt lgkmcnt({2*out+1-h})')
            for cs in range(2):
                a=ACC+16*hh+8*h+4*cs; f=(SF if cs else CF)+4*k
                A(f'v_mfma_f32_16x16x32_bf16 v[{a}:{a+3}], v[{AF+8*sl+4*h}:{AF+8*sl+4*h+3}], v[{f}:{f+3}], '+(f'v[{a}:{a+3}]' if k else '0'))
        if kp+3<14: rd(kp+3)
    ST(3)
    A('s_barrier')
    for fr in range(4): A(f'ds_read_b128 v[{8+4*fr}:{11+4*fr}], v6 offset:{BPB+1024*fr}')
    for p in range(8):
        A(f'v_pk_fma_f32 v[{ACC+2*p}:{ACC+2*p+1}], v[122:123], v[{ACC+16+2*p}:{ACC+17+2*p}], v[{ACC+2*p}:{ACC+2*p+1}] op_sel_hi:[0,1,1]')
    for p in range(8): A(f'v_cvt_pk_bf16_f32 v{24+p}, v{ACC+2*p}, v{ACC+2*p+1}')
    A('''s_waitcnt lgkmcnt(0)
v_mfma_f32_16x16x32_bf16 v[32:35], v[8:11], v[24:27], 0
v_mfma_f32_16x16x32_bf16 v[36:39], v[16:19], v[24:27], 0
v_mfma_f32_16x16x32_bf16 v[32:35], v[12:15], v[28:31], v[32:35]
v_mfma_f32_16x16x32_bf16 v[36:39], v[20:23], v[28:31], v[36:39]''')
    for r in range(4):
        A(f'v_cvt_pk_bf16_f32 v{40+r}, v{32+r}, v{36+r}\nbuffer_store_dword v{40+r}, v7, s[20:23], s{32+r} offen sc1')
    ST(4)
    A('s_setprio 0')
    A(f'''L_prep:
s_mov_b32 s22, {WSSZ}
s_mov_b32 s23, 0x20000
s_mov_b32 s18, 1835008
s_mov_b32 s19, 0x20000
s_lshr_b32 s33, s28, 1
s_and_b32 s34, s28, 1
s_cmp_eq_u32 s33, 0
s_cselect_b32 s32, s26, s27
s_and_b32 s35, s24, 3
s_lshl_b32 s35, s35, 9
s_add_u32 s35, s35, s32
v_lshrrev_b32 v2, 4, v0
v_and_b32 v1, 15, v0
v_lshl_add_u32 v44, v2, 7, s35
s_mul_i32 s36, s34, 14
s_cmp_lt_u32 s24, 4
s_cbranch_scc1 L_dir
v_sub_u32 v44, 0x800, v44
v_and_b32 v44, 0x7ff, v44
s_sub_u32 s36, 42, s36
s_cmp_lg_u32 s26, 0
s_cselect_b32 s37, 1, 0
s_xor_b32 s33, s33, s37
L_dir:
v_lshrrev_b32 v45, 7, v44
v_min_u32 v46, 13, v1
v_add_u32 v46, s36, v46
s_lshl_b32 s37, s33, 6
v_lshl_add_u32 v47, v45, 2, s37
ds_read_b32 v48, v47 offset:{RS}
ds_read_b32 v49, v47 offset:{NB}
v_lshrrev_b32 v47, 1, v45
v_xor_b32 v47, v47, v46
v_and_b32 v47, 7, v47
v_and_b32 v50, 7, v45
v_lshl_add_u32 v47, v50, 3, v47
v_lshlrev_b32 v47, 4, v47
v_lshrrev_b32 v50, 3, v45
v_mul_u32_u24 v50, 7, v50
v_lshrrev_b32 v51, 3, v46
v_add_u32 v50, v50, v51
v_lshl_add_u32 v47, v50, 10, v47
s_mul_i32 s37, s33, 14336
v_add_u32 v47, s37, v47
ds_read_b128 v[52:55], v47
s_bfe_u32 s38, s32, 0x20004
v_lshlrev_b32 v6, 4, v0''')
    for sl in range(4):
        A(f'''s_add_u32 s37, s38, {sl}
s_and_b32 s37, s37, 3
s_lshl_b32 s{40+sl}, s37, 10
v_add_u32 v50, s{40+sl}, v6
ds_read_b128 v[{8+4*sl}:{11+4*sl}], v50 offset:{F2B}''')
    A(f'''s_and_b32 s37, s32, 15
s_lshl_b32 s37, s37, 4
s_lshl3_add_u32 s37, s34, s37
s_add_u32 s37, s37, s24
s_lshl_b32 s37, s37, 12
s_add_u32 s37, s37, {HB}
v_add_u32 v7, s37, v6
s_lshl_b32 s39, s24, 12
s_add_u32 s39, s39, {HS}
v_lshl_add_u32 v5, v0, 2, s39
v_mul_u32_u24 v3, 896, v44
v_lshl_add_u32 v3, v46, 4, v3
v_cmp_gt_u32 vcc, 14, v1
v_mov_b32 v50, 0x7fffffff
v_cndmask_b32 v3, v50, v3, vcc
s_mul_i32 s37, s24, 56
v_lshlrev_b32 v4, 11, v2
v_lshl_add_u32 v50, v1, 2, s37
v_sub_u32 v51, v4, v50
v_add_u32 v4, v4, v50
v_add_u32 v4, {YB+16}, v4
v_add_u32 v51, {YB+16*512+16+448}, v51
s_lshl_b32 s37, s24, 11
v_lshl_add_u32 v45, v0, 5, s37
v_cmp_ne_u32 vcc, 0, v46
s_waitcnt lgkmcnt(0)''')
    XV=56; GV=64
    for i in range(4):
        A(f'v_lshlrev_b32 v{XV+2*i}, 16, v{52+i}\nv_and_b32 v{XV+2*i+1}, 0xffff0000, v{52+i}')
    for i in range(8): A(f'v_fma_f32 v{GV+i}, v{XV+i}, v48, -v49')
    for i in range(8): A(f'v_mul_f32 v{72+i}, {hx(-1.4426950408889634)}, v{GV+i}')
    for i in range(8): A(f'v_exp_f32 v{72+i}, v{72+i}')
    for i in range(8): A(f'v_add_f32 v{72+i}, 1.0, v{72+i}')
    for i in range(8): A(f'v_rcp_f32 v{72+i}, v{72+i}')
    for i in range(8): A(f'v_mul_f32 v{GV+i}, v{GV+i}, v{72+i}')
    A(f'v_cndmask_b32 v{GV}, 0, v{GV}, vcc')
    A(f'''s_add_u32 s37, s28, 4
s_cmp_lg_u32 s24, s37
s_cbranch_scc0 L_poller
s_waitcnt vmcnt(0)''')
    ST(5)
    A('''s_barrier
s_barrier
s_branch L_go
L_poller:''')
    A(f'''v_mov_b32 v80, 0
ds_read_b128 v[84:87], v80 offset:{KM}
v_mov_b32 v82, s30
v_mov_b32 v83, s31
v_mov_b32 v81, 0
s_lshl_b32 s37, s28, 6
s_add_u32 s37, s37, s26
s_lshl_b32 s37, s37, 6
s_add_u32 s37, s37, {FLAG}
s_lshl_b32 s36, s34, 13
s_add_u32 s36, s36, {FLAG}
s_add_u32 s35, s36, 4096
v_lshlrev_b32 v96, 6, v0
s_waitcnt lgkmcnt(0)
v_max3_u32 v80, v84, v85, v86
v_max_u32 v80, v80, v87
s_mov_b32 s33, 0''')
    ST(5)
    A(f'''s_barrier
s_mov_b64 exec, 1
buffer_store_dwordx4 v[80:83], off, s[20:23], s37 sc1
s_mov_b64 exec, -1
L_poll:
buffer_load_dwordx4 v[84:87], v96, s[20:23], s36 offen sc1
buffer_load_dwordx4 v[88:91], v96, s[20:23], s35 offen sc1
s_add_u32 s33, s33, 1
s_cmp_gt_u32 s33, {SPIN}
s_cbranch_scc1 L_pollx
s_waitcnt vmcnt(0)
v_cmp_ne_u64 vcc, s[30:31], v[86:87]
v_cmp_ne_u64 s[44:45], s[30:31], v[90:91]
s_or_b64 vcc, vcc, s[44:45]
s_cbranch_scc1 L_poll
L_pollx:
s_barrier
L_go:''')
    ST(6)
    for sl in range(4):
        A(f's_add_u32 m0, s39, {1024*sl}\nbuffer_load_dwordx4 v7, s[20:23], s{40+sl} offen sc1 lds')
    A(f'''s_add_u32 s37, s28, 4
s_cmp_lg_u32 s24, s37
s_cbranch_scc1 L_noidx''')
    for p in ['quad_perm:[1,0,3,2]','quad_perm:[2,3,0,1]','row_half_mirror','row_mirror']:
        A(f'v_max_u32_dpp v84, v84, v84 {p} row_mask:0xf bank_mask:0xf')
    A(f'''v_readlane_b32 s46, v84, 0
v_readlane_b32 s47, v84, 16
v_readlane_b32 s48, v84, 32
v_readlane_b32 s49, v84, 48
s_max_u32 s46, s46, s47
s_max_u32 s48, s48, s49
s_max_u32 s46, s46, s48
s_and_b32 s46, s46, 0x7ff
v_mov_b32 v84, s46
v_mov_b32 v85, 0
ds_write_b32 v85, v84 offset:{IDXL}
L_noidx:''')
    for sl in range(4):
        A(f'''s_waitcnt vmcnt({3-sl})
ds_read2st64_b32 v[{24+4*sl}:{25+4*sl}], v5 offset0:{4*sl} offset1:{4*sl+1}
ds_read2st64_b32 v[{26+4*sl}:{27+4*sl}], v5 offset0:{4*sl+2} offset1:{4*sl+3}''')
        if sl>0:
            A(f's_waitcnt lgkmcnt(2)' if not stamps else 's_waitcnt lgkmcnt(0)')
            p=sl-1
            A(f'v_mfma_f32_16x16x32_bf16 v[40:43], v[{8+4*p}:{11+4*p}], v[{24+4*p}:{27+4*p}], '+('v[40:43]' if p else '0'))
    ST(7)
    A(f'''s_waitcnt lgkmcnt(0)
v_mfma_f32_16x16x32_bf16 v[40:43], v[20:23], v[36:39], v[40:43]
v_mov_b32 v80, 0
ds_write2st64_b32 v4, v40, v41 offset0:0 offset1:2
ds_write2st64_b32 v4, v42, v43 offset0:4 offset1:6
ds_write2st64_b32 v51, v40, v41 offset0:0 offset1:2
ds_write2st64_b32 v51, v42, v43 offset0:4 offset1:6
s_waitcnt lgkmcnt(0)
s_barrier
ds_read_b32 v81, v80 offset:{IDXL}
ds_read_b128 v[72:75], v45 offset:{YB+16}
ds_read_b128 v[76:79], v45 offset:{YB+32}
v_mov_b32 v50, 0x7fffffff
s_waitcnt lgkmcnt(1)
v_cmp_ne_u32 vcc, v81, v44''')
    for i in range(4): A(f'v_fmac_f32 v{XV+i}, v{72+i}, v{GV+i}')
    A('v_cndmask_b32 v3, v50, v3, vcc\ns_waitcnt lgkmcnt(0)')
    for i in range(4,8): A(f'v_fmac_f32 v{XV+i}, v{72+i}, v{GV+i}')
    for i in range(4): A(f'v_cvt_pk_bf16_f32 v{52+i}, v{XV+2*i}, v{XV+2*i+1}')
    A('buffer_store_dwordx4 v[52:55], v3, s[16:19], 0 offen')
    ST(8)
    if stamps: A('s_waitcnt vmcnt(0)'); ST(9); A('s_branch L_stamps')
    A('s_endpgm')
    A('L_ffn:')
    if probe:
        A(f'''s_cmp_lg_u32 s2, 312
s_cbranch_scc1 L_noprobe
s_cmp_lg_u32 s24, 0
s_cbranch_scc1 L_end
s_load_dwordx2 s[40:41], s[0:1], {probe[0]}
s_waitcnt lgkmcnt(0)
v_mov_b32 v1, {probe[1]}
{probe[2]}
s_memtime s[42:43]
s_waitcnt lgkmcnt(0)
{probe[3]}
s_memtime s[44:45]
s_waitcnt lgkmcnt(0)
s_sub_u32 s46, s44, s42
s_min_u32 s46, s46, 5000
s_mul_i32 s46, s46, 5
s_memrealtime s[48:49]
s_waitcnt lgkmcnt(0)
L_prs:
s_memrealtime s[42:43]
s_waitcnt lgkmcnt(0)
s_sub_u32 s42, s42, s48
s_cmp_lt_u32 s42, s46
s_cbranch_scc1 L_prs
s_endpgm
L_noprobe:''')
    A(f'''s_cmp_ge_u32 s2, 312
s_cbranch_scc1 L_end
s_and_b32 s25, s2, 7
s_bfe_u32 s26, s2, 0x30003
s_mul_i32 s25, s25, 7
s_add_u32 s25, s25, s26
s_mov_b32 s22, {WSSZ}
s_mov_b32 s23, 0x20000
v_and_b32 v1, 15, v0
v_lshrrev_b32 v2, 4, v0
v_lshrrev_b32 v3, 3, v0
v_and_b32 v4, 7, v0
s_cmp_eq_u32 s24, 7
s_cbranch_scc1 L_fpoll
v_bfe_u32 v5, v0, 2, 1
v_lshl_add_u32 v6, v5, 2, v2
s_lshl_b32 s27, s24, 3
v_add_u32 v6, s27, v6
v_mul_u32_u24 v7, 8*3584, v6
v_and_b32 v8, 3, v0
v_lshl_add_u32 v7, v8, 4, v7
s_lshl_b32 s28, s25, 6
s_add_u32 s28, s28, 3584
v_add_u32 v10, s28, v7
v_mov_b32 v11, 0
v_cmp_lt_u32 vcc, 7, v1
v_mul_u32_u24 v14, 896, v3
v_lshl_add_u32 v14, v4, 4, v14
s_mul_i32 s28, s25, 32*896
s_lshl_b32 s29, s24, 7
s_add_u32 s28, s28, s29
v_add_u32 v14, s28, v14
s_mov_b32 s32, 3*3584
s_mov_b32 s33, 0
s_lshl_b32 s34, s24, 12
s_waitcnt lgkmcnt(0)
v_mov_b32 v12, s10
v_mov_b32 v13, s11
v_mov_b32 v15, s12
v_mov_b32 v16, s13
v_cndmask_b32 v12, v12, v15, vcc
v_cndmask_b32 v13, v13, v16, vcc
v_lshl_add_u64 v[10:11], v[10:11], 0, v[12:13]''')
    RW=32; FR=64; DF=16; AC=32
    for i in range(8):
        A(f'global_load_dwordx4 v[{RW+4*i}:{RW+4*i+3}], v[10:11], off offset:{(i%3-1)*3584}')
        if i%3==2: A('v_lshl_add_u64 v[10:11], v[10:11], 0, s[32:33]')
    for a in range(4):
        A(f's_add_u32 m0, s34, {1024*a}\nglobal_load_lds_dwordx4 v14, s[14:15]')
        if a<3: A(f'v_add_u32 v14, 8*896, v14')
    ST(1)
    A(f'''s_mov_b32 s36, 0x05040100
s_mov_b32 s37, 0x07060302
v_lshlrev_b32 v9, 4, v6
v_lshrrev_b32 v12, 2, v1
v_lshlrev_b32 v12, 7, v12
v_lshl_add_u32 v12, v8, 3, v12
v_lshl_add_u32 v12, v2, 10, v12
v_add_u32 v12, s34, v12
v_lshrrev_b32 v13, 3, v1
v_lshl_add_u32 v13, v13, 2, v8
v_mul_u32_u24 v13, 640, v13
v_lshl_add_u32 v13, v5, 2, v13
v_add_u32 v13, s27, v13
v_add_u32 v13, {PB}, v13
v_cmp_eq_u32 s[38:39], v5, v2
v_mul_u32_u24 v15, 80, v0
s_lshl_b32 s28, s24, 6
v_and_b32 v10, 31, v0
v_lshl_add_u32 v10, v10, 1, s28
v_lshl_add_u32 v11, v2, 4, s28
v_add_u32 v7, s27, v3
v_mul_u32_u24 v7, 7168, v7
v_lshl_add_u32 v7, v4, 4, v7
s_lshl_b32 s40, s25, 7
s_add_u32 s40, s40, {PART}
s_mul_i32 s41, s25, 7168
s_lshl_b32 s29, s24, 10
s_add_u32 s41, s41, s29
s_add_u32 s41, s41, {PART}
v_lshlrev_b32 v14, 4, v0
s_lshl_b32 s29, s24, 2
v_lshl_add_u32 v3, v4, 5, s29
v_mov_b32 v96, 0''')
    for ip in range(4):
        A(f's_waitcnt vmcnt({10-2*ip})')
        for dw in range(4):
            A(f'v_perm_b32 v{FR+8*dw+ip}, v{RW+8*ip+4+dw}, v{RW+8*ip+dw}, s36\nv_perm_b32 v{FR+8*dw+4+ip}, v{RW+8*ip+4+dw}, v{RW+8*ip+dw}, s37')
    ST(2)
    A('s_waitcnt vmcnt(0)')
    for t in range(4):
        A(f'ds_read_b64_tr_b16 v[{DF+4*t}:{DF+4*t+1}], v12 offset:{32*t}\nds_read_b64_tr_b16 v[{DF+4*t+2}:{DF+4*t+3}], v12 offset:{32*t+512}')
    ST(3)
    A(f'''s_waitcnt lgkmcnt(0)
s_barrier
ds_read_b128 v[100:103], v96 offset:{INFO}
ds_read_b64 v[106:107], v96 offset:{INFO+16}
s_waitcnt lgkmcnt(0)
v_add_u32 v9, v9, v100
buffer_load_dwordx4 v[108:111], v9, s[4:7], 0 offen''')
    ST(4)
    A('s_waitcnt vmcnt(0)')
    for i in range(4):
        A(f'''v_lshlrev_b32 v112, 16, v{108+i}
v_and_b32 v113, 0xffff0000, v{108+i}
v_fma_f32 v112, v112, v101, -v102
v_fma_f32 v113, v113, v101, -v102
v_cvt_pk_bf16_f32 v{108+i}, v112, v113''')
    for c in range(8):
        A(f'v_mfma_f32_16x16x32_bf16 v[{AC+4*c}:{AC+4*c+3}], v[108:111], v[{FR+4*c}:{FR+4*c+3}], 0')
    A('s_mov_b64 exec, s[38:39]')
    for c in range(0,8,2):
        A(f'ds_write2_b32 v13, v{AC+4*c}, v{AC+4*c+4} offset0:{20*c} offset1:{20*c+20}')
    A(f'''s_mov_b64 exec, -1
s_waitcnt lgkmcnt(0)''')
    ST(5)
    A(f'''s_barrier
ds_read_b128 v[64:67], v15 offset:{PB}
ds_read_b128 v[68:71], v15 offset:{PB+16}
ds_read_b128 v[72:75], v15 offset:{PB+32}
ds_read_b64 v[76:77], v15 offset:{PB+48}
s_waitcnt lgkmcnt(0)
v_pk_add_f32 v[64:65], v[64:65], v[66:67]
v_pk_add_f32 v[68:69], v[68:69], v[70:71]
v_pk_add_f32 v[72:73], v[72:73], v[74:75]
v_pk_add_f32 v[64:65], v[64:65], v[76:77]
v_pk_add_f32 v[68:69], v[68:69], v[72:73]
v_pk_add_f32 v[64:65], v[64:65], v[68:69]
v_add_f32 v66, v64, v65
v_add_f32 v67, v64, v65
v_permlane32_swap_b32 v66, v67
v_mul_f32 v68, {hx(-1.4426950408889634)}, v66
v_exp_f32 v68, v68
v_mul_f32 v67, v66, v67
v_add_f32 v68, 1.0, v68
v_rcp_f32 v68, v68
v_cmp_eq_u32 s[42:43], 1, v2
v_mul_f32 v67, v67, v68
v_cvt_pk_bf16_f32 v67, v67, v67
ds_write_b16 v10, v67 offset:{HHB}
ds_read_b128 v[68:71], v11 offset:{HHB}
v_cmp_eq_u32 s[44:45], 2, v2
v_cmp_eq_u32 vcc, 3, v2
v_mov_b32 v105, 0
s_waitcnt lgkmcnt(0)''')
    for t in range(4):
        A(f'v_mfma_f32_16x16x32_bf16 v[{AC+4*t}:{AC+4*t+3}], v[68:71], v[{DF+4*t}:{DF+4*t+3}], 0')
    A(f'''v_cndmask_b32 v104, v{AC}, v{AC+4}, s[42:43]
v_cndmask_b32 v104, v104, v{AC+8}, s[44:45]
v_cndmask_b32 v104, v104, v{AC+12}, vcc
buffer_store_dwordx4 v[104:107], v7, s[20:23], s40 offen sc1
s_mov_b32 s33, 0''')
    ST(6)
    A(f'''L_ppoll:
buffer_load_dwordx4 v[64:67], v14, s[20:23], s41 offen sc1
s_add_u32 s33, s33, 1
s_cmp_gt_u32 s33, {SPIN}
s_cbranch_scc1 L_ppollx
s_waitcnt vmcnt(0)
v_cmp_ne_u64 vcc, v[66:67], v[106:107]
s_cbranch_vccnz L_ppoll
L_ppollx:''')
    ST(7)
    A(f'''v_add_f32_dpp v64, v64, v64 row_ror:8 row_mask:0xf bank_mask:0xf
v_mov_b32 v65, v64
v_permlane16_swap_b32 v64, v65
v_add_f32 v66, v64, v65
v_add_f32 v67, v64, v65
v_permlane32_swap_b32 v66, v67
v_add_f32 v64, v66, v67
ds_write_b32 v3, v64 offset:{YS}
s_waitcnt lgkmcnt(0)
s_barrier''')
    ST(8)
    if stamps: ST(9); A('s_branch L_stamps')
    A('s_endpgm')
    A(f'''L_fpoll:
s_waitcnt lgkmcnt(0)
s_load_dwordx2 s[30:31], s[20:21], 0
s_mov_b32 s18, 1835008
s_mov_b32 s19, 0x20000
v_lshlrev_b32 v5, 6, v0
s_mov_b32 s36, {KEY}
s_mov_b32 s37, {KEY+4096}
s_mov_b32 s38, {KEY+8192}
s_mov_b32 s39, {KEY+12288}
s_lshl_b32 s27, s25, 3
v_add_u32 v6, s27, v4
v_sub_u32 v7, 448, v6
s_cmp_lt_u32 s25, 28
s_cselect_b64 vcc, -1, 0
v_cndmask_b32 v7, v7, v6, vcc
v_mul_u32_u24 v8, 4682, v7
v_lshrrev_b32 v8, 16, v8
v_min_u32 v8, 15, v8
v_mul_u32_u24 v9, 14, v8
v_sub_u32 v9, v7, v9
v_lshlrev_b32 v9, 2, v9
v_lshl_add_u32 v9, v8, 12, v9
v_lshl_add_u32 v9, v3, 6, v9
v_readlane_b32 s40, v8, 0
v_readlane_b32 s41, v8, 7
s_lshr_b32 s40, s40, 2
s_lshr_b32 s41, s41, 2
s_lshl_b32 s40, s40, 12
s_lshl_b32 s41, s41, 12
s_add_u32 s40, s40, {FLAG}
s_add_u32 s41, s41, {FLAG}
s_mov_b32 s33, 0
s_waitcnt lgkmcnt(0)
s_add_u32 s30, s30, 0x9e3779b9
s_add_u32 s31, s31, 0x7f4a7c15''')
    ST(1)
    A(f'''L_kpoll:
buffer_load_dwordx4 v[16:19], v5, s[20:23], s36 offen sc1
buffer_load_dwordx4 v[20:23], v5, s[20:23], s37 offen sc1
buffer_load_dwordx4 v[24:27], v5, s[20:23], s38 offen sc1
buffer_load_dwordx4 v[28:31], v5, s[20:23], s39 offen sc1
s_add_u32 s33, s33, 1
s_cmp_gt_u32 s33, {SPIN}
s_cbranch_scc1 L_kpollx
s_waitcnt vmcnt(0)
v_cmp_ne_u64 vcc, s[30:31], v[18:19]
v_cmp_ne_u64 s[42:43], s[30:31], v[22:23]
v_cmp_ne_u64 s[44:45], s[30:31], v[26:27]
v_cmp_ne_u64 s[46:47], s[30:31], v[30:31]
s_or_b64 vcc, vcc, s[42:43]
s_or_b64 s[44:45], s[44:45], s[46:47]
s_or_b64 vcc, vcc, s[44:45]
s_cbranch_scc1 L_kpoll
L_kpollx:''')
    ST(2)
    A(f'''v_max3_u32 v32, v16, v20, v24
v_max_u32 v32, v32, v28
v_cmp_eq_u32 vcc, v32, v20
v_cmp_eq_u32 s[42:43], v32, v24
v_cmp_eq_u32 s[44:45], v32, v28
v_max_u32_dpp v33, v32, v32 quad_perm:[1,0,3,2] row_mask:0xf bank_mask:0xf
v_cndmask_b32 v17, v17, v21, vcc
v_cndmask_b32 v17, v17, v25, s[42:43]
v_max_u32_dpp v33, v33, v33 quad_perm:[2,3,0,1] row_mask:0xf bank_mask:0xf
v_cndmask_b32 v17, v17, v29, s[44:45]
v_max_u32_dpp v33, v33, v33 row_half_mirror row_mask:0xf bank_mask:0xf
v_max_u32_dpp v33, v33, v33 row_mirror row_mask:0xf bank_mask:0xf
v_readlane_b32 s46, v33, 0
v_readlane_b32 s47, v33, 16
v_readlane_b32 s48, v33, 32
v_readlane_b32 s49, v33, 48
s_max_u32 s46, s46, s47
s_max_u32 s48, s48, s49
s_max_u32 s46, s46, s48
v_cmp_eq_u32 vcc, s46, v32
s_ff1_i32_b64 s47, vcc
v_readlane_b32 s47, v17, s47
s_and_b32 s48, s46, 0x7ff
s_mul_i32 s49, s48, 896
s_and_b32 s50, s47, 0xffff0000
s_lshl_b32 s51, s47, 16
v_rcp_f32 v37, s50
v_mov_b32 v36, s49
v_mov_b32 v40, s30
v_mov_b32 v41, s31
v_mov_b32 v42, 0
v_mul_f32 v38, s51, v37
ds_write_b128 v42, v[36:39] offset:{INFO}
ds_write_b64 v42, v[40:41] offset:{INFO+16}
s_waitcnt lgkmcnt(0)''')
    ST(3)
    A(f'''s_barrier
v_lshl_add_u32 v10, v6, 1, s49
buffer_load_ushort v11, v10, s[4:7], 0 offen
s_sub_u32 s52, 0x800, s48
s_and_b32 s52, s52, 0x7ff
s_cmp_lt_u32 s25, 28
s_cselect_b32 s52, s48, s52
s_lshr_b32 s53, s52, 4
s_and_b32 s52, s52, 15
s_lshl_b32 s52, s52, 16
s_add_u32 s52, s52, {HB}
v_cvt_f32_u32 v12, s53
v_cvt_f32_u32 v13, v3
v_mul_f32 v12, {hx(1/128)}, v12
v_mul_f32 v13, v13, v12
v_mul_f32 v12, {hx(8.0)}, v12
s_bitcmp1_b32 s53, 0
s_cselect_b32 s53, -1.0, 1.0
v_mov_b32 v14, s53
v_cmp_eq_u32 vcc, 0, v3''')
    for i in range(8):
        A('v_cos_f32 v16, v13\nv_sin_f32 v17, v13')
        if i<7: A('v_add_f32 v13, v13, v12')
        if i==0: A('v_cndmask_b32 v17, v17, v14, vcc')
        A(f'v_cvt_pk_bf16_f32 v{48+i}, v16, v17')
    A(f'''s_andn2_b32 s46, s46, 0x7ff
s_ashr_i32 s47, s46, 31
s_not_b32 s47, s47
s_or_b32 s47, s47, 0x80000000
s_xor_b32 s46, s46, s47
v_mov_b32 v15, s46
v_mul_f32 v15, {hx(-1.4426950408889634)}, v15
v_exp_f32 v15, v15
v_add_f32 v15, 1.0, v15
v_rcp_f32 v15, v15
v_lshlrev_b32 v43, 5, v4
s_mov_b32 s33, 0
s_barrier''')
    ST(4)
    A(f'''L_hpoll:
buffer_load_dwordx4 v[16:19], v5, s[20:23], s40 offen sc1
buffer_load_dwordx4 v[20:23], v5, s[20:23], s41 offen sc1
s_add_u32 s33, s33, 1
s_cmp_gt_u32 s33, {SPIN}
s_cbranch_scc1 L_hpollx
s_waitcnt vmcnt(0)
v_cmp_ne_u64 vcc, s[30:31], v[18:19]
v_cmp_ne_u64 s[42:43], s[30:31], v[22:23]
s_or_b64 vcc, vcc, s[42:43]
s_cbranch_scc1 L_hpoll
L_hpollx:''')
    ST(5)
    for i in range(8): A(f'buffer_load_dword v{56+i}, v9, s[20:23], s52 offen offset:{512*i} sc1')
    A(f'''v_mov_b32 v44, 0
v_lshlrev_b32 v11, 16, v11
v_fma_f32 v45, v11, v37, -v38
v_cmp_ne_u32 vcc, 0, v6
s_waitcnt vmcnt(0)''')
    ST(6)
    for i in range(8): A(f'v_dot2c_f32_bf16 v44, v{48+i}, v{56+i}')
    A(f'''v_add_f32_dpp v44, v44, v44 row_ror:8 row_mask:0xf bank_mask:0xf
v_mov_b32 v46, v44
v_permlane16_swap_b32 v44, v46
v_add_f32 v16, v44, v46
v_add_f32 v17, v44, v46
v_permlane32_swap_b32 v16, v17
v_add_f32 v44, v16, v17
v_cndmask_b32 v44, 0, v44, vcc''')
    ST(7)
    A(f'''s_barrier
ds_read_b128 v[16:19], v43 offset:{YS}
ds_read_b96 v[20:22], v43 offset:{YS+16}
s_waitcnt lgkmcnt(0)
v_pk_add_f32 v[16:17], v[16:17], v[18:19]
v_add_f32 v20, v20, v21
v_add_f32 v16, v16, v17
v_add_f32 v20, v20, v22
v_add_f32 v16, v16, v20
v_fmac_f32 v45, v16, v15
v_mul_f32 v16, {hx(-1.4426950408889634)}, v45
v_exp_f32 v16, v16
v_mul_f32 v45, v45, v44
v_add_f32 v16, 1.0, v16
v_rcp_f32 v16, v16
s_mov_b64 exec, 0xff
v_fmac_f32 v11, v45, v16
v_cvt_pk_bf16_f32 v11, v11, v11
buffer_store_short v11, v10, s[16:19], 0 offen
s_cmp_lg_u32 s25, 0
s_cbranch_scc1 L_noctl
s_mov_b64 exec, 1
buffer_store_dwordx2 v[40:41], off, s[20:23], 0
L_noctl:''')
    ST(8)
    if stamps:
        A('s_waitcnt vmcnt(0)'); ST(9)
        A(f'''L_stamps:
s_waitcnt lgkmcnt(0)''')
        if amp:
            wg,wave,a,b,k=amp
            A(f'''s_cmp_lg_u32 s2, {wg}
s_cbranch_scc1 L_end
s_cmp_lg_u32 s24, {wave}
s_cbranch_scc1 L_end
s_sub_u32 s40, s{64+2*b}, s{64+2*a}
s_min_u32 s40, s40, 5000
s_mul_i32 s40, s40, {k}
L_amp:
s_memrealtime s[42:43]
s_waitcnt lgkmcnt(0)
s_sub_u32 s42, s42, s82
s_cmp_lt_u32 s42, s40
s_cbranch_scc1 L_amp
s_branch L_end''')
        A(f'''
s_mov_b64 exec, 1
s_lshl3_add_u32 s3, s2, s24
s_lshl_b32 s3, s3, 6
s_add_u32 s3, s3, {STAMPS}''')
        for i in range(10): A(f'v_mov_b32 v{4+i}, s{64+2*i}')
        A('v_mov_b32 v14, s33\nv_mov_b32 v15, 0')
        A('buffer_store_dwordx4 v[4:7], off, s[20:23], s3\nbuffer_store_dwordx4 v[8:11], off, s[20:23], s3 offset:16\nbuffer_store_dwordx4 v[12:15], off, s[20:23], s3 offset:32')
    A('L_end:\ns_endpgm')
    if probe: A('.fill 2048, 4, 0xbf800000\nL_far:\ns_setpc_b64 s[50:51]')
    A(f'''.section .rodata,"a"
.p2align 6
.amdhsa_kernel {NAME}
.amdhsa_next_free_vgpr 128
.amdhsa_next_free_sgpr 96
.amdhsa_accum_offset 128
.amdhsa_group_segment_fixed_size 0
.amdhsa_kernarg_size 104
.amdhsa_user_sgpr_count 2
.amdhsa_user_sgpr_kernarg_segment_ptr 1
.amdhsa_system_sgpr_workgroup_id_x 1
.end_amdhsa_kernel''')
    return HEADER+f'; @launch grid=({313 if probe else 312},1,1) block=(512,1,1) lds={LDS}\n'+A.text()
if __name__=='__main__':
    open('k1.s','w').write(gen(False))
    open('k1_st.s','w').write(gen(True))
    ld='global_load_dword v2, v1, s[40:41]\ns_waitcnt vmcnt(0)'
    wait='s_mov_b32 s47, 0\nL_w8:\ns_add_u32 s47, s47, 1\ns_cmp_lt_u32 s47, 1500\ns_cbranch_scc1 L_w8'
    open('pr0.s','w').write(gen(probe=(40,0x1000,wait,'s_nop 0')))
    open('pr1.s','w').write(gen(probe=(40,0x1000,wait,ld)))
    open('pr2.s','w').write(gen(probe=(40,0x1000,wait+'\n'+ld+'\nv_add_u32 v1, 0x10000, v1',ld)))
    open('pr3.s','w').write(gen(probe=(96,0x800000,wait+'\n'+ld+'\nv_add_u32 v1, 0x10000, v1',ld)))
    open('pr4.s','w').write(gen(probe=(8,0x1000,wait+'\n'+ld+'\nv_add_u32 v1, 0x10000, v1',ld)))
    open('pr5.s','w').write(gen(probe=(40,0x1000,wait,'s_call_b64 s[50:51], L_far')))
```

```python
import re
TRANS=('v_exp_f32','v_log_f32','v_rcp_f32','v_rsq_f32','v_sqrt_f32','v_sin_f32','v_cos_f32','v_rcp_iflag_f32')
def regs(tok):
    tok=tok.strip()
    tok=re.sub(r'^-','',tok); tok=re.sub(r'^abs\((.*)\)$',r'\1',tok); tok=tok.strip('|')
    m=re.fullmatch(r'([vsa])(\d+)',tok)
    if m: return {(m.group(1),int(m.group(2)))}
    m=re.fullmatch(r'([vsa])\[(\d+):(\d+)\]',tok)
    if m: return {(m.group(1),i) for i in range(int(m.group(2)),int(m.group(3))+1)}
    if tok=='vcc': return {('s','vcc_lo'),('s','vcc_hi')}
    if tok in('vcc_lo','vcc_hi'): return {('s',tok)}
    if tok=='exec': return {('s','exec_lo'),('s','exec_hi')}
    if tok in('exec_lo','exec_hi'): return {('s',tok)}
    if tok=='m0': return {('s','m0')}
    return set()
class Ins:
    def __init__(s,text):
        s.text=text
        t=text.split(';')[0].strip()
        s.op=t.split()[0]
        rest=t[len(s.op):].strip()
        ops=[];cur='';dep=0
        for ch in rest:
            if ch=='[':dep+=1
            if ch==']':dep-=1
            if ch==',' and dep==0: ops.append(cur.strip());cur=''
            else: cur+=ch
        if cur.strip(): ops.append(cur.strip())
        s.mods=''
        if ops:
            last=ops[-1].split()
            ops[-1]=last[0]; s.mods=' '.join(last[1:])
        s.ops=ops
        op=s.op
        s.valu=op.startswith('v_') and not op.startswith('v_mfma')
        s.mfma=op.startswith('v_mfma')
        s.salu=op.startswith('s_')
        s.vmem=op.startswith(('buffer_','global_'))
        s.ds=op.startswith('ds_')
        s.trans=op.replace('_e32','').replace('_e64','') in TRANS
        s.dpp='_dpp' in op or 'quad_perm' in s.mods or 'row_' in s.mods
        s.dot=op.startswith('v_dot')
        s.perml=op.startswith('v_permlane')
        R=[regs(o) for o in ops]
        W=set();Rd=set()
        if s.valu or s.mfma:
            W|=R[0]
            start=1
            if op.startswith(('v_add_co','v_sub_co','v_addc_co','v_subb_co','v_subrev_co')): W|=R[1]; start=2
            for r in R[start:]: Rd|=r
            if op.startswith(('v_fmac','v_dot2c','v_permlane','v_swap','v_writelane')) or s.dpp: Rd|=R[0]
            if op.startswith(('v_permlane','v_swap')): W|=R[1]
        elif s.vmem:
            lds=('lds' in s.mods.split()) or 'load_lds' in op
            if 'load' in op and not lds: W|=R[0]; [Rd.update(r) for r in R[1:]]
            else: [Rd.update(r) for r in R]
            if lds: Rd.add(('s','m0'))
            s.lds=lds
            s.wide_data=set()
            if 'store' in op and op.endswith(('x3','x4')):
                s.wide_data = R[0] if op.startswith('buffer') else R[1]
        elif s.ds:
            if op.startswith(('ds_read','ds_bpermute','ds_permute','ds_swizzle')) or '_rtn' in op: W|=R[0]; [Rd.update(r) for r in R[1:]]
            else: [Rd.update(r) for r in R]
        elif s.salu:
            if op.startswith(('s_cmp','s_bitcmp','s_cbranch','s_branch','s_waitcnt','s_barrier','s_nop','s_endpgm','s_setprio','s_sleep','s_setpc')):
                [Rd.update(r) for r in R]
            else:
                if R: W|=R[0]
                [Rd.update(r) for r in R[1:]]
                if 'saveexec' in op: W|=regs('exec')
        s.W=W; s.R=Rd
        if s.mfma: s.srcc=R[3]; s.srcab=R[1]|R[2]; s.passes=8 if '32x32' in op else (2 if '4x4x4' in op else 4)
        s.states = (int(ops[0],0)+1) if op=='s_nop' else 1
def need(p,c):
    n=0
    vW={r for r in p.W if r[0] in 'va'}; sW={r for r in p.W if r[0]=='s'}
    if p.valu:
        if c.op.startswith(('v_readlane','v_readfirstlane')) and vW&c.R: n=max(n,1)
        if c.valu and sW&c.R: n=max(n,4 if c.op.startswith(('v_readlane','v_writelane')) else 2)
        if c.vmem and sW&c.R: n=max(n,5)
        if c.valu and (c.dpp or c.perml) and vW&c.R: n=max(n,2)
        if c.mfma and vW&c.R: n=max(n,2)
        if p.trans and c.valu and not c.trans and vW&c.R: n=max(n,1)
        if p.trans and (c.vmem or c.ds) and vW&c.R: n=max(n,1)
        if p.dot and vW&(c.R|c.W):
            if not (c.op==p.op and not (vW & (regs(c.ops[1])|regs(c.ops[2])))): n=max(n,3)
        if ('sdwa' in p.op or 'op_sel:' in p.mods) and c.valu and vW&c.R: n=max(n,1)
    if p.salu and ('s','m0') in p.W and ('s','m0') in c.R and c.vmem: n=max(n,1)
    if p.mfma:
        big={2:5,4:8,8:12}[p.passes]
        if c.mfma:
            if vW&c.srcab: n=max(n,big)
            if vW&c.srcc:
                if not (vW==c.srcc and c.op==p.op): n=max(n,{2:4,4:6,8:10}[p.passes])
                elif p.passes==2: n=max(n,2)
        elif vW&(c.R|c.W): n=max(n,big)
        if c.valu and p.srcc&c.W: n=max(n,{2:1,4:3,8:7}[p.passes])
    if p.vmem and getattr(p,'wide_data',None) and p.wide_data&c.W: n=max(n,2)
    return n
def fix_hazards(lines, verbose=False):
    out=[]; hist=[]; added=0
    for ln in lines:
        t=ln.split(';')[0].strip()
        if not t or t.endswith(':') or t.startswith('.'):
            out.append(ln); continue
        c=Ins(ln)
        dist=0; pad=0
        for p in reversed(hist):
            nd=need(p,c)
            if nd>dist: pad=max(pad,nd-dist)
            dist+=p.states
            if dist>=20: break
        if pad:
            nop=f's_nop {pad-1}'
            out.append(nop); hist.append(Ins(nop)); added+=1
            if verbose: print('pad',pad,'before',ln)
        out.append(ln); hist.append(c)
        if c.op in('s_branch','s_endpgm','s_setpc_b64'): hist=[]
    return out
class Asm:
    def __init__(s): s.L=[]
    def __call__(s,txt):
        for l in txt.split('\n'):
            l=l.strip()
            if l: s.L.append(l)
    def text(s,verbose=False): return '\n'.join(fix_hazards(s.L,verbose))+'\n'

import subprocess, tempfile, os
def _sizes(text):
    d=tempfile.mkdtemp(); f=os.path.join(d,'a.s'); o=os.path.join(d,'a.o')
    open(f,'w').write(text)
    r=subprocess.run(['clang','-x','assembler','-target','amdgcn-amd-amdhsa','-mcpu=gfx950','-c',f,'-o',o],capture_output=True,text=True)
    assert r.returncode==0, r.stderr
    r=subprocess.run(['llvm-objdump','-d','-z','--mcpu=gfx950',o],capture_output=True,text=True)
    out=[]
    for l in r.stdout.split('\n'):
        m=re.search(r'// [0-9A-F]{12}: ((?:[0-9A-F]{8} ?)+)',l)
        if m: out.append(4*len(m.group(1).split()))
    return out
NOPROMO=('v_readfirstlane','v_swap','v_permlane','v_dot2c','v_nop','v_fmamk','v_fmaak')
def align_runs(text, minrun=5, verbose=False):
    L=text.split('\n'); idx=[i for i,l in enumerate(L) if (lambda t: t and not t.endswith(':') and not t.startswith('.'))(l.split(';')[0].strip())]
    sz=_sizes(text)[:len(idx)]
    n=len(idx); off=0; k=0; barrier=0; ins={}; fixed=0; pads=0
    while k<n:
        if sz[k]==8:
            e=k
            while e<n and sz[e]==8: e+=1
            heavy=sum(1 for j in range(k,e) if L[idx[j]].startswith('v_mfma'))
            if e-k>=minrun and heavy*4<e-k:
                if off%8:
                    done=False
                    for j in range(k-1,max(barrier,k-40)-1,-1):
                        op=L[idx[j]].split()[0]
                        if sz[j]==4 and op.startswith('v_') and not op.startswith(NOPROMO) and not op.endswith(('_e32','_e64')):
                            L[idx[j]]=L[idx[j]].replace(op,op+'_e64',1); sz[j]=8; off+=4; done=True; fixed+=1; break
                    if not done and e-k>=8:
                        ins[idx[k]]='s_nop 0'; off+=4; pads+=1
                barrier=e
            off+=8*(e-k); k=e
        else:
            off+=sz[k]; k+=1
    out=[]
    for i,l in enumerate(L):
        if i in ins: out.append(ins[i])
        out.append(l)
    if verbose: print('widened',fixed,'padded',pads)
    return '\n'.join(out)
```

```python
import sys, struct
from asmlib import Asm, align_runs
NAME="recurrent_scan__spectral_fnet__moe_arch_mod__prompt_kernel"
def f2u(x): return struct.unpack('I',struct.pack('f',x))[0]
def hx(x): return '0x%08x'%f2u(x)
KEY=0x10000; KEY2=0x20000; PART=0x30000; HB=0x100000; STAMPS=0x200000; WSSZ=0x400000
MISC=28672; F2B=MISC+512; BPB=F2B+4096; WX=BPB+4096; YB=46080; HS=YB+16384
RS=MISC; NB=MISC+128; KM=MISC+256; IDXL=MISC+288
ZX=HS+32768
LDS=HS+65536
PB=0; XROW=2048; INFO=3072; GU=4096; DN=GU+57344
SPIN=1<<16
C1=0x9e3779b9; C2=0x7f4a7c15
NL2E=hx(-1.4426950408889634)
DPP='row_mask:0xf bank_mask:0xf'
HEADER=open('recurrent_scan__spectral_fnet__moe_arch_mod__prompt.s.ref').read().split('; Override')[0]
def gen(stamps=False, only=None, cyc=0, cpf=16, rot=384, bat=10, sprio=2, mprio=1, ack=0, gate=1, k2=0, osc='sc1',
        fpace=0, hpace=0, sched=[2]*6+[4]*6, kat=11, pack=1, st1=0, lag=1, hst=0, pg=0,
        gM=2, gS=4, mM=3, mS=4, kc=3, ki=-1, ix=4, bprio=0, cut='', pwp=2, pwk=1, fsc='sc1', dl=1,
        pwo=1, xpf=0, xd=0, ad2=1, p1=0, il=1, n0=8, aln=5, wrm=1, fw=0, sA=1, sB=2, mA=0, mB=0, hat=1, fl=99, dlate=0, kw=9, gtr=0, g0=7, nH=4, nP=2, nQ=0, fst=0, ho=1, one=1, kord=0):
    assert pwp
    pads=0; two=0; wb=1; wsk=1; wb4=0; hj0=7; spec=0
    A=Asm()
    def ST(i):
        if stamps and (only is None or i in only or i in (0,9)): A(('s_memtime' if cyc else 's_memrealtime')+f' s[{64+2*i}:{65+2*i}]')
    def STW(i):
        ST(i)
        if stamps: A('s_waitcnt lgkmcnt(0)')
    def LG(n): A(f's_waitcnt lgkmcnt({n})')
    def LGS(n): A(f's_waitcnt lgkmcnt({0 if stamps else n})')
    npad=[0]
    def PAD():
        if pads:
            k=npad[0]; npad[0]+=1
            A(f'L_pad{k}:\ns_cbranch_execz '+(f'L_pad{k+4}' if k<4 else 'L_padret'))
    def calls(a,b,p):
        if a==p: A('s_call_b64 s[92:93], L_addr')
        if b==p: A('s_call_b64 s[92:93], L_addr2')
    NG=56-g0; NJ=NG+32
    def pjob(tag):
        A(f'''s_cmp_ge_u32 s39, {NG}
s_cbranch_scc1 L_pd{tag}
s_add_u32 s39, s39, {g0}
s_mul_i32 s42, s39, 9363
s_lshr_b32 s42, s42, 16
s_mul_i32 s44, s42, 7
s_sub_u32 s39, s39, s44
s_lshr_b32 s43, s42, 1
s_lshl2_add_u32 s39, s39, s43
s_mul_i32 s39, s39, 16*3584
s_mul_i32 s43, s25, 448
s_andn2_b32 s43, s43, 127
s_add_u32 s43, s43, s39
v_lshrrev_b32 v11, 2, v0
v_mul_u32_u24 v11, 28, v11
v_and_or_b32 v11, v0, 3, v11
s_bitcmp1_b32 s42, 0
s_cselect_b32 s40, s12, s10
s_cselect_b32 s41, s13, s11
s_branch L_pe{tag}
L_pd{tag}:
s_sub_u32 s39, s39, {NG}
s_cmp_lt_u32 s39, 32
s_cselect_b32 s42, 48, 0
s_cselect_b32 s39, s39, 0
s_lshl_b32 s43, s25, 5
s_add_u32 s43, s43, s39
s_mul_i32 s43, s43, 49*128
v_min_u32 v11, s42, v0
s_mov_b32 s40, s14
s_mov_b32 s41, s15
L_pe{tag}:
v_lshl_add_u32 v11, v11, 7, s43''')
    def nonce(): A(f's_add_u32 s30, s30, {C1}\ns_add_u32 s31, s31, {C2}')
    def pace(n,base):
        for p in range(n): A(f's_lshl_b32 s35, s2, 7\ns_add_u32 s35, s35, {base+p*0x10000}\ns_load_dword s35, s[20:21], s35\ns_waitcnt lgkmcnt(0)')
    def wavemax(v,src,s0=46):
        A(f'v_max_u32_dpp v{v}, v{src}, v{src} quad_perm:[1,0,3,2] {DPP}')
        for p in ['quad_perm:[2,3,0,1]','row_half_mirror','row_mirror']: A(f'v_max_u32_dpp v{v}, v{v}, v{v} {p} {DPP}')
        A(f'''v_readlane_b32 s{s0}, v{v}, 0
v_readlane_b32 s{s0+1}, v{v}, 16
v_readlane_b32 s{s0+2}, v{v}, 32
v_readlane_b32 s{s0+3}, v{v}, 48
s_max_u32 s{s0}, s{s0}, s{s0+1}
s_max_u32 s{s0+2}, s{s0+2}, s{s0+3}
s_max_u32 s{s0}, s{s0}, s{s0+2}''')
    A(f'''.amdgcn_target "amdgcn-amd-amdhsa--gfx950"
.text
.globl {NAME}
.p2align 8
.type {NAME},@function
{NAME}:''')
    ST(0)
    A(f'''s_load_dwordx2 s[4:5], s[0:1], 0
s_load_dwordx8 s[8:15], s[0:1], 48
s_load_dwordx2 s[16:17], s[0:1], 80
s_load_dwordx2 s[20:21], s[0:1], 96
v_lshrrev_b32 v1, 6, v0
s_mov_b32 s6, 1835008
s_mov_b32 s7, 0x20000
v_readfirstlane_b32 s24, v1
v_and_b32 v0, 63, v0''')
    if cpf:
        n=-(-96//cpf)
        A(f'''s_cmp_lg_u32 s24, 0
s_cbranch_scc1 L_nocp
s_getpc_b64 s[26:27]
s_bfe_u32 s25, s2, {hex(((cpf.bit_length()-1)<<16)|3)}
s_mul_i32 s25, s25, {n*128}
v_min_u32 v2, {n-1}, v0
v_lshl_add_u32 v2, v2, 7, s25
v_mov_b32 v3, 0
v_lshl_add_u64 v[2:3], v[2:3], 0, s[26:27]
global_load_dword v255, v[2:3], off offset:384
L_nocp:''')
    A(f'''s_mov_b32 s22, {WSSZ}
s_mov_b32 s23, s7
s_mov_b32 s18, s6
s_mov_b32 s19, s7
s_and_b32 s25, s2, 7
s_cmp_ge_u32 s2, 128
s_cbranch_scc1 L_other
s_lshr_b32 s28, s2, 6
s_sub_u32 s26, 16, s25
s_cmp_eq_u32 s25, 0
s_cselect_b32 s26, 8, s26
s_bitcmp1_b32 s2, 3
s_cselect_b32 s26, s26, s25
s_and_b32 s27, s2, 48
s_add_u32 s26, s27, s26
s_sub_u32 s27, 128, s26
s_cmp_eq_u32 s26, 0
s_cselect_b32 s27, 64, s27
s_cmp_lt_u32 s24, 4
s_cbranch_scc1 L_mfma''')
    A(f'''s_setprio 3
s_sub_u32 s29, s24, 4
s_bitcmp1_b32 s24, 1
s_cselect_b32 s32, s27, s26
s_and_b32 s33, s24, 1
s_lshl_b32 s34, s33, 10
s_add_u32 s32, s32, s34
v_lshrrev_b32 v1, 3, v0
v_lshl_add_u32 v2, v1, 7, s32
v_mul_u32_u24 v3, 896, v2
v_lshrrev_b32 v4, 4, v0
v_lshlrev_b32 v5, 2, v4
v_xor_b32 v5, v0, v5
v_and_b32 v5, 7, v5
v_lshl_add_u32 v3, v5, 4, v3
v_lshlrev_b32 v6, 4, v0
s_mul_i32 s35, s29, 7168
s_mul_i32 s36, s28, {rot}
s_mov_b32 s37, 7
v_min_u32 v7, 0x370, v6
s_cmp_lg_u32 s28, 0
s_waitcnt lgkmcnt(0)
s_load_dwordx2 s[30:31], s[20:21], 0
s_cbranch_scc1 L_xl
global_load_dwordx4 v[52:55], v7, s[8:9]
L_xl:
s_lshl3_add_u32 m0, s36, s35
s_sub_u32 s37, s37, 1
buffer_load_dwordx4 v3, s[4:7], s36 offen lds
s_add_u32 s36, s36, 128
s_cmp_eq_u32 s36, 896
s_cselect_b32 s36, 0, s36
s_cmp_lg_u32 s37, 0
s_cbranch_scc1 L_xl''')
    if not st1: ST(1)
    A(f'''v_and_b32 v10, 15, v0
v_lshrrev_b32 v11, 2, v10
v_and_b32 v12, 1, v0
v_lshl_add_u32 v13, v11, 1, v12
v_cmp_eq_u32 s[54:55], 1, v12
s_lshl_b32 s46, s29, 5
v_lshl_add_u32 v16, v13, 2, s46
v_lshl_add_u32 v2, v13, 7, s32
v_and_or_b32 v11, v0, 4, v4
v_lshl_add_u32 v11, v13, 3, v11
v_lshl_add_u32 v48, v11, 4, s35
v_and_b32 v11, 2, v0
v_cmp_eq_u32 vcc, 2, v11
s_lshl_b32 s38, s29, 8
s_add_u32 s38, s38, {WX}
v_lshl_add_u32 v13, v12, 3, v4
v_lshl_add_u32 v13, v13, 4, s38
v_cndmask_b32 v48, v48, v13, vcc
s_mul_i32 s44, s28, {8*rot}
s_xor_b32 s45, s28, 1
s_mul_i32 s45, s45, {7168-8*rot}
v_add_u32 v50, s45, v48
v_add_u32 v48, s44, v48
v_xor_b32 v49, 64, v48
v_xor_b32 v51, 64, v50
v_and_b32 v8, 0x70, v6
v_lshl_add_u32 v7, v1, 10, v8
v_add_u32 v7, s38, v7
v_mov_b32 v56, 0x3f803f80
v_mov_b32 v57, v56
v_mov_b32 v58, v56
v_mov_b32 v59, v56
ds_write_b128 v7, v[56:59]
s_add_u32 s46, s46, {RS}
v_lshl_add_u32 v17, v4, 2, s46
v_lshl_add_u32 v9, v1, 13, v8
s_lshl_b32 s50, s26, 7
s_add_u32 s50, s50, {KEY}
s_add_u32 s51, s50, {KEY2-KEY}
s_lshr_b32 s44, s29, 1
s_lshl_b32 s44, s44, 10
s_lshl3_add_u32 s44, s33, s44
s_add_u32 s44, s44, {ZX}
v_lshrrev_b32 v63, 2, v16
v_and_or_b32 v11, v63, 4, s44
v_and_b32 v63, 3, v63
v_lshl_add_u32 v63, v63, 8, v11
v_mov_b32 v19, 1
v_mov_b32 v60, 0
v_mov_b32 v61, 0
v_mov_b32 v62, 0
ds_write_b96 v60, v[60:62] offset:{KM}''')
    A(f'''v_lshl_add_u32 v13, v4, 7, s32
v_mul_u32_u24 v13, v13, v10
v_cvt_f32_u32 v13, v13
v_cvt_f32_u32 v14, v10
v_mul_f32 v13, {hx(1/2048)}, v13
v_fmamk_f32 v14, v14, {hx(0.25)}, v13
s_mov_b32 s46, {hx(0.25)}
s_bitcmp1_b32 s24, 1
s_cselect_b32 s46, {hx(-0.25)}, s46
s_cselect_b32 s56, 0, -1
s_cselect_b32 s57, -1, 0
s_cmp_eq_u32 s26, 0
s_cselect_b32 s46, 0, s46
s_cselect_b32 s56, s56, -1
s_cselect_b32 s57, s57, -1
v_add_f32 v15, s46, v13
v_add_f32 v46, s46, v14''')
    for i,r in enumerate([13,14,15,46]): A(f'v_cos_f32 v{24+2*i}, v{r}\nv_sin_f32 v{25+2*i}, v{r}')
    A(f'''s_lshr_b32 s46, s29, 1
s_lshl_b32 s46, s46, 10
s_lshl3_add_u32 s46, s33, s46
v_add_u32 v18, s46, v6
''')
    A(f'''s_lshr_b32 s39, s2, 3
s_lshl4_add_u32 s39, s29, s39
s_add_u32 s39, s39, {9*nH}
s_cmp_lt_u32 s29, {nP}
s_cselect_b32 s39, s39, 999''')
    if nQ: A(f'''s_lshr_b32 s42, s2, 3
s_add_u32 s42, s42, {9*nH+16*nP-8}
s_lshl2_add_u32 s43, s28, s29
s_cmp_eq_u32 s43, {4+nP}
s_cselect_b32 s39, s42, s39''')
    pjob('p')
    A('global_load_dword v255, v11, s[40:41]')
    A(f'''s_waitcnt lgkmcnt(0)''')
    nonce()
    A(f'''v_mov_b32 v38, s30
v_mov_b32 v39, s31
s_mov_b32 s47, 0x7ff''')
    calls(sA,sB,1)
    if pads:
        A('''s_mov_b64 exec, 0
s_cmp_eq_u32 s29, 0
s_cbranch_scc1 L_pad0
s_cmp_eq_u32 s29, 1
s_cbranch_scc1 L_pad1
s_cmp_eq_u32 s29, 2
s_cbranch_scc1 L_pad2
s_branch L_pad3
L_padret:
s_mov_b64 exec, -1''')
    if wsk: A('s_cmp_lg_u32 s28, 0\ns_cbranch_scc1 L_wsk')
    A(f'''s_waitcnt vmcnt(8)
ds_write_b128 v7, v[52:55] offset:128
L_wsk:''')
    if st1==1: STW(1)
    XR=64
    nA=7-rot//128
    km=0
    for c in range(7+lag):
        if c<7:
            A(f's_waitcnt vmcnt({7-c})')
            if st1==2 and c==6: STW(1)
            for hf in range(2): A(f'ds_read_b128 v[{XR+8*c+4*hf}:{XR+3+8*c+4*hf}], v{(48 if c<nA else 50)+hf} offset:{1024*(c if c<nA else c-nA)}')
        if c>=lag:
            LG(2*(min(6,c)-(c-lag)))
            for hf in range(2):
                k=2*(c-lag)+hf
                if k==bat:
                    assert c>=6
                    A('s_barrier')
                if k==10 and bat==15: A('s_cmp_eq_u32 s28, 0\ns_cbranch_scc1 L_nb1\ns_barrier\nL_nb1:')
                A(f'v_mfma_f32_16x16x32_bf16 v[20:23], v[{XR+4*k}:{XR+3+4*k}], v[{XR+4*k}:{XR+3+4*k}], '+('v[20:23]' if k else '0'))
    if bat==14: A('s_barrier')
    A(f's_setprio {sprio}')
    if bprio==2: A('s_cmp_eq_u32 s28, 0\ns_cbranch_scc1 L_bp\ns_setprio 0\nL_bp:')
    ST(2)
    A(f'''v_mul_f32 v34, {hx(1/448)}, v22
v_cndmask_b32 v21, v20, v21, s[54:55]
v_mul_f32_e64 v32, -v34, v34
v_mov_b32_dpp v35, v22 quad_perm:[3,3,3,3] {DPP}
v_fmamk_f32 v21, v21, {hx(1/448)}, v32
v_max_f32 v21, 0, v21
v_cvt_pk_bf16_f32 v21, 0, v21
v_add_f32 v21, {hx(1e-5)}, v21
v_cvt_pk_bf16_f32 v21, 0, v21
v_sqrt_f32 v21, v21
v_cvt_pk_bf16_f32 v32, 0, v34
v_cvt_pk_bf16_f32 v33, 0, v21
v_cvt_pk_bf16_f32 v36, v34, v21
v_rcp_f32 v21, v33
v_fma_f32 v23, -v32, v35, v23
s_mov_b32 exec_lo, 0x00300003
s_mov_b32 exec_hi, 0x30000300
s_mov_b32 s58, 0
s_cmp_lg_u32 s28, 0
s_cbranch_scc1 L_nok1
v_mul_f32 v23, v23, v21
v_ashrrev_i32 v33, 31, v23
v_or_b32 v33, 0x80000000, v33
v_xor_b32 v23, v23, v33
v_bfi_b32 v37, s47, v2, v23
{'s_barrier' if bat==15 else ''}
ds_max_u64 v60, v[36:37] offset:{KM}
ds_add_rtn_u32 v34, v60, v19 offset:{KM+8}''')
    if True:
        A(f'''L_nok1:
v_mul_f32 v20, v32, v21
ds_write_b32 v16, v21 offset:{RS}
ds_write_b32 v16, v20 offset:{NB}
s_mov_b64 exec, -1
ds_read_b64 v[36:37], v60 offset:{KM}
ds_read2_b32 v[40:41], v17 offset0:0 offset1:4
s_cbranch_scc1 L_nokey''')
        LGS(1)
    A(f'''v_readfirstlane_b32 s58, v34
s_cmp_lt_u32 s58, 24
s_cbranch_scc1 L_nok2
buffer_store_dwordx4 v[36:39], v9, s[20:23], s50 offen sc1''')
    if k2==0 and not one: A('buffer_store_dwordx4 v[36:39], v9, s[20:23], s51 offen sc1')
    A(f'''L_nok2:
v_fmamk_f32 v22, v32, {hx(-448.0)}, v22
s_mov_b32 exec_lo, 0x00300003
s_mov_b32 exec_hi, 0x30000300
v_cvt_pk_bf16_f32 v22, v22, 0
ds_write_b32 v63, v22
s_mov_b64 exec, -1
L_nokey:''')
    if bprio: A('s_setprio 0')
    PAD()
    ST(3)
    LG(0)
    for i in range(8): A(f'v_mul_f32 v{24+i}, v{24+i}, v{40+((i>>1)&1)}')
    A(f'''v_cvt_pk_bf16_f32 v44, v24, -v25
v_cvt_pk_bf16_f32 v45, v26, -v27
v_cvt_pk_bf16_f32 v46, v28, -v29
v_cvt_pk_bf16_f32 v47, v30, -v31
v_and_b32 v44, s56, v44
v_and_b32 v45, s56, v45
v_and_b32 v46, s57, v46
v_and_b32 v47, s57, v47
ds_write_b64 v18, v[44:45] offset:{BPB}
ds_write_b64 v18, v[46:47] offset:{BPB+2048}
s_setprio 0''')
    def key2(tag): A(f's_cmp_lt_u32 s58, 24\ns_cbranch_scc1 L_k2{tag}\nbuffer_store_dwordx4 v[36:39], v9, s[20:23], s51 offen sc1\nL_k2{tag}:')
    if k2==1: key2('a')
    calls(sA,sB,2)
    if k2==3: key2('c')
    LG(0)
    ST(4)
    A('s_barrier')
    if k2==2: key2('b')
    calls(sA,sB,0)
    A('s_branch L_prep')
    A(f'''L_addr:
s_cmp_eq_u32 s28, 0
s_cselect_b32 s94, s26, s27
s_mov_b32 s95, s28
s_and_b32 s96, s24, 3
s_lshl_b32 s96, s96, 9
s_add_u32 s96, s96, s94
v_lshrrev_b32 v240, 5, v0
v_and_b32 v241, 31, v0
v_lshl_add_u32 v216, v240, 8, s96
v_add_u32 v217, 0x80, v216
v_min_u32 v218, 27, v241
v_cmp_gt_u32 vcc, 28, v241
s_cmp_lt_u32 s24, 4
s_cbranch_scc1 L_dir
v_sub_u32 v216, 0x800, v216
v_sub_u32 v217, 0x800, v217
v_and_b32 v216, 0x7ff, v216
v_add_u32 v218, 28, v218
s_cmp_lg_u32 s26, 0
s_cselect_b32 s96, 1, 0
s_xor_b32 s95, s95, s96
L_dir:
s_lshl_b32 s96, s95, 6
s_add_u32 s96, s96, {RS}
s_mul_i32 s95, s95, 14
v_lshrrev_b32 v240, 3, v218
v_add_u32 v240, s95, v240
v_mov_b32 v233, 0x7fffffff''')
    for a in range(2):
        A(f'''v_lshrrev_b32 v241, 7, v{216+a}
v_lshl_add_u32 v{219+a}, v241, 2, s96
v_lshlrev_b32 v242, 1, v241
v_bitop3_b32 v242, v242, 4, v218 bitop3:0x6a
v_lshlrev_b32 v243, 3, v241
v_bfi_b32 v242, 7, v242, v243
v_and_b32 v242, 63, v242
v_lshrrev_b32 v241, 3, v241
v_mad_u32_u24 v241, v241, 7, v240
v_lshl_add_u32 v242, v241, 6, v242
v_lshlrev_b32 v{221+a}, 4, v242
v_mad_u32_u24 v241, v{216+a}, 56, v218
v_lshlrev_b32 v241, 4, v241
v_cndmask_b32 v{223+a}, v233, v241, vcc''')
    A('s_setpc_b64 s[92:93]\nL_addr2:')
    A(f'''v_lshlrev_b32 v231, 4, v0
v_and_b32 v240, 15, v0
v_cmp_lt_u32 s[88:89], 13, v240
v_cmp_eq_u32 vcc, 15, v240
s_and_b32 s96, s94, 15
s_lshl4_add_u32 s96, s96, s24
s_lshl_b32 s96, s96, 12
s_add_u32 s84, s96, {HB}
s_add_u32 s85, s84, 0x8000
s_lshl_b32 s86, s24, 13
s_add_u32 s86, s86, {HS}
s_add_u32 s87, s86, 4096
s_pack_ll_b32_b16 s96, s30, s31
s_pack_hh_b32_b16 s97, s30, s31
v_mov_b32 v225, s96
v_mov_b32 v241, s97
v_cndmask_b32 v225, v225, v241, vcc
s_cmp_eq_u32 s24, 6
s_cselect_b64 s[88:89], vcc, s[88:89]
v_and_or_b32 v226, v231, 48, s86
v_and_b32 v241, 56, v0
v_lshl_add_u32 v226, v241, 3, v226
v_and_b32 v241, 4, v0
v_lshl_add_u32 v226, v241, 1, v226
s_lshr_b32 s95, s24, 1
s_mul_i32 s95, s95, 14
s_sub_u32 s96, 113, s95
s_bitcmp1_b32 s24, 0
s_cselect_b32 s95, s96, s95
s_cselect_b32 s96, -1, 0
v_xor_b32 v240, s96, v240
v_add_u32 v240, s95, v240
v_sub_u32 v241, 224, v240
v_lshrrev_b32 v242, 5, v241
v_and_b32 v242, 4, v242
v_xor_b32 v241, v241, v242
s_movk_i32 s96, {YB//4}
v_and_or_b32 v242, v0, 16, s96
v_and_b32 v243, 48, v0
v_lshl_add_u32 v242, v243, 5, v242
v_add_lshl_u32 v227, v240, v242, 2
v_add_lshl_u32 v228, v241, v242, 2
s_lshl_b32 s96, s24, 11
s_and_b32 s97, s24, 1
s_lshl_b32 s97, s97, 6
s_add_u32 s96, s96, s97
s_add_u32 s96, s96, {YB}
v_lshl_add_u32 v229, v0, 5, s96
v_and_or_b32 v229, v0, 16, v229
v_xor_b32 v230, 16, v229
v_mov_b32 v232, 4
s_setpc_b64 s[92:93]''')
    BC=8; BS=22; AR=40; ACC=96; ZP=136
    P2=lambda x: f'v[{x}:{x+1}]'
    A('L_mfma:')
    ST(1)
    A(f'''s_lshl2_add_u32 s29, s28, s24
s_lshr_b32 s32, s29, 1
s_mul_i32 s32, s32, 14
v_and_b32 v1, 15, v0
v_lshrrev_b32 v2, 4, v0
v_add_u32 v3, s32, v1
s_mov_b32 s34, {hx(2.0**-32)}
v_mul_u32_u24 v4, 9586980, v3
v_mul_u32_u24 v5, 37449, v3
v_add_u32 v5, 0x8000, v5
v_lshrrev_b32 v5, 16, v5
v_add_u32 v4, v4, v5
v_add_lshl_u32 v5, v2, 12, 4
v_mul_lo_u32 v5, v5, v4
v_lshlrev_b32 v6, 6, v4
v_cvt_f32_u32 v4, v4
v_cvt_f32_i32 v100, v5
v_cvt_f32_i32 v6, v6
v_mul_f32 v4, s34, v4
v_mul_f32 v6, s34, v6
v_mov_b32 v96, 0
v_mul_f32 v97, 4.0, v4
v_cos_f32 v36, v6
v_add_f32 v98, v97, v97
v_pk_fma_f32 v[100:101], v[100:101], s[34:35], v[96:97] op_sel_hi:[0,0,1]
v_add_f32 v36, v36, v36
v_pk_add_f32 v[102:103], v[100:101], v[98:99] op_sel_hi:[1,0]
v_pk_add_f32 v[104:105], v[100:101], v[6:7] op_sel_hi:[1,0]
v_pk_add_f32 v[106:107], v[102:103], v[6:7] op_sel_hi:[1,0]''')
    X=lambda c,r: AR+8*c+2*r
    for i in range(8): A(f'v_cos_f32 v{X(3,0)+2*i}, v{100+i}\nv_sin_f32 v{X(3,0)+2*i+1}, v{100+i}')
    A('s_waitcnt lgkmcnt(0)\ns_load_dwordx2 s[30:31], s[20:21], 0')
    def cv(c):
        for p in range(2): A(f'v_cvt_pk_bf16_f32 v{BC+2*c+p}, v{X(c,2*p)}, v{X(c,2*p+1)}\nv_cvt_pk_bf16_f32 v{BS+2*c+p}, v{X(c,2*p)+1}, v{X(c,2*p+1)+1}')
    for (d,x,y) in [(2,3,4),(5,4,3),(1,2,3),(6,5,4),(0,1,2)]:
        for r in range(4): A(f'v_pk_fma_f32 {P2(X(d,r))}, v[36:37], {P2(X(x,r))}, {P2(X(y,r))} op_sel_hi:[0,1,1] neg_lo:[0,0,1] neg_hi:[0,0,1]')
    for c in (3,4,2,5,1,6,0): cv(c)
    A(f'''v_add_f32 v5, v4, v4
v_add_f32 v6, v5, v4
v_mov_b32 v128, 1.0
v_mov_b32 v130, 0
v_cos_f32 v129, v4
v_sin_f32 v131, v4
v_cos_f32 v132, v5
v_sin_f32 v134, v5
v_cos_f32 v133, v6
v_sin_f32 v135, v6
v_lshrrev_b32 v4, 3, v0
v_lshlrev_b32 v5, 1, v0
v_bitop3_b32 v4, v5, 4, v4 bitop3:0x6a
v_and_b32 v6, 3, v0
v_lshl_add_u32 v4, v6, 3, v4
s_and_b32 s33, s24, 1
s_mul_i32 s36, s33, 14336
v_and_or_b32 v5, v5, 8, s36
v_lshl_add_u32 v4, v4, 4, v5
s_lshr_b32 s36, s24, 1
s_lshl_b32 s36, s36, 13
s_lshl_b32 s33, s33, 10
s_add_u32 s36, s36, s33
s_add_u32 s36, s36, {ZX}
v_lshl_add_u32 v5, v0, 4, s36
v_cmp_eq_u32 vcc, 0, v3
v_mov_b32 v7, {ZX+16384}
s_lshl_b32 s36, s24, 12
s_add_u32 s36, s36, {ZX}
v_lshl_add_u32 v6, v0, 4, s36
v_cndmask_b32 v7, v5, v7, vcc
s_waitcnt lgkmcnt(0)''')
    if pwk:
        A(f'''s_cmp_gt_u32 s29, {pwk-1}
s_cbranch_scc1 L_npk
v_lshrrev_b32 v80, 3, v0
v_and_b32 v81, 7, v0
v_lshlrev_b32 v81, 4, v81
v_lshl_add_u32 v80, v80, 13, v81
s_lshl_b32 s36, s26, 7
s_lshl_b32 s37, s29, 16
s_add_u32 s36, s36, s37
s_add_u32 s36, s36, {KEY}
v_mov_b32 v86, s30
v_mov_b32 v87, s31
buffer_store_dwordx4 v[84:87], v80, s[20:23], s36 offen sc1
L_npk:''')
    nonce()
    A(f'''v_cmp_lt_u32 vcc, 47, v0
s_cmp_eq_u32 s29, 6
s_cselect_b32 s36, 0xffff0000, -1
v_lshlrev_b32 v207, 4, v0
v_cndmask_b32 v206, 0, -1, vcc
v_and_b32 v205, s36, v206
s_lshl_b32 s37, s24, 13
s_add_u32 s37, s37, {HS}
s_movk_i32 s38, 80
v_and_or_b32 v208, v0, 48, s37
v_mad_u32_u24 v208, v1, s38, v208
v_lshrrev_b32 v204, 2, v0
v_and_b32 v209, 48, v207
v_mad_u32_u24 v210, v204, s38, v209
v_add_u32 v210, s37, v210
v_lshl_add_u32 v204, v204, 16, v209
s_lshl_b32 s48, s29, 12
s_lshl_b32 s49, s26, 6
s_add_u32 s48, s48, s49
s_add_u32 s48, s48, {HB}
s_add_u32 s49, s48, 0x8000
s_cmp_eq_u32 s28, 0
s_cselect_b32 s44, s26, s27
s_lshr_b32 s45, s44, 4
v_lshl_add_u32 v80, v1, 3, s45
v_cvt_f32_u32 v80, v80
v_mul_f32 v80, {hx(1/128)}, v80
s_lshl_b32 s36, s24, 4
v_lshrrev_b32 v81, 3, v0
v_and_or_b32 v81, v81, 6, s36
v_cmp_eq_u32 vcc, 0, v81
v_cvt_f32_u32 v81, v81
v_mul_f32 v81, v80, v81
s_bitcmp1_b32 s45, 0
s_cselect_b32 s36, -1.0, 1.0
s_mov_b32 s43, {hx(1/16)}
v_mov_b32 v82, s36''')
    for jq in range(4):
        A(f'v_cos_f32 v83, v81\nv_sin_f32 v88, v81')
        if jq<3: A('v_add_f32 v81, v81, v80' if jq!=1 else f'v_fmac_f32 v81, {hx(7.0)}, v80')
        else: A('s_lshl_b32 s36, s24, 10')
        if jq==0: A('v_cndmask_b32 v88, v88, v82, vcc')
        A(f'v_mul_f32 v83, s43, v83\nv_mul_f32 v88, s43, v88\nv_cvt_pk_bf16_f32 v{212+jq}, v83, v88')
    A('v_add_u32 v211, s36, v207')
    calls(mA,mB,1)
    A(f's_setprio {mprio}')
    STW(2)
    A('s_barrier')
    if p1: STW(1)
    q=[]
    def rd(T,c):
        A(f'ds_read_b64_tr_b16 {P2(AR+14*T+2*c)}, v4 offset:{(T>>1)*7168+(T&1)*512+1024*c}'); q.append((T,c))
    def need(T,c):
        if (T,c) in q:
            k=q.index((T,c)); LG(len(q)-k-1); del q[:k+1]
    todo=[(T,c) for T in range(4) for c in range(6)]+[(T,6) for T in range(4)]
    for _ in range(n0): rd(*todo.pop(0))
    for T,st in [(T,st) for T in range(4) for st in range(3)]+[(T,3) for T in range(4)]:
        if st==3: need(3,6)
        else: need(T,2*st+1)
        for cs in range(2):
            a=ACC+8*T+4*cs; x=AR+14*T+4*st; f=(BS if cs else BC)+4*st
            if st<3: A(f'v_mfma_f32_16x16x32_bf16 v[{a}:{a+3}], v[{x}:{x+3}], v[{f}:{f+3}], '+(f'v[{a}:{a+3}]' if st else '0'))
            else: A(f'v_mfma_f32_16x16x16_bf16 v[{a}:{a+3}], {P2(x)}, {P2(f)}, v[{a}:{a+3}]')
            if todo and len(q)<14: rd(*todo.pop(0))
    assert not todo and not q
    A(f'ds_write_b128 v211, v[212:215] offset:{F2B}')
    ST(3)
    def bfly(T):
        Sr=ACC+8*T; Si=Sr+4; t=AR+14*(T&1)
        Pr,Pi,Ar_,Ai_=t,t+2,t+4,t+6
        L=[f'v_pk_mul_f32 {P2(Pr)}, {P2(Sr)}, v[128:129]',
           f'v_pk_mul_f32 {P2(Pi)}, {P2(Si)}, v[128:129]',
           f'v_pk_fma_f32 {P2(Pr)}, {P2(Si)}, v[130:131], {P2(Pr)} neg_lo:[1,0,0] neg_hi:[1,0,0]',
           f'v_pk_fma_f32 {P2(Pi)}, {P2(Sr)}, v[130:131], {P2(Pi)}',
           f'v_pk_fma_f32 {P2(Ar_)}, {P2(Sr+2)}, v[132:133], {P2(Pr)}',
           f'v_pk_fma_f32 {P2(Ai_)}, {P2(Si+2)}, v[132:133], {P2(Pi)}',
           f'v_pk_fma_f32 {P2(Ar_)}, {P2(Si+2)}, v[134:135], {P2(Ar_)} neg_lo:[1,0,0] neg_hi:[1,0,0]',
           f'v_pk_fma_f32 {P2(Ai_)}, {P2(Sr+2)}, v[134:135], {P2(Ai_)}',
           f'v_pk_fma_f32 {P2(Pr)}, {P2(Pr)}, 2.0, {P2(Ar_)} op_sel_hi:[1,0,1] neg_lo:[0,0,1] neg_hi:[0,0,1]',
           f'v_pk_fma_f32 {P2(Pi)}, {P2(Pi)}, 2.0, {P2(Ai_)} op_sel_hi:[1,0,1] neg_lo:[0,0,1] neg_hi:[0,0,1]',
           f'v_pk_add_f32 {P2(Sr)}, {P2(Ar_)}, {P2(Ar_)} op_sel:[0,1] op_sel_hi:[0,1] neg_hi:[0,1]',
           f'v_pk_add_f32 {P2(Sr+2)}, {P2(Ai_)}, {P2(Ai_)} op_sel:[1,0] op_sel_hi:[1,0] neg_hi:[0,1]',
           f'v_pk_add_f32 {P2(Si)}, {P2(Pr)}, {P2(Pi)} op_sel:[0,1] op_sel_hi:[0,1] neg_hi:[0,1]',
           f'v_pk_add_f32 {P2(Si+2)}, {P2(Pr)}, {P2(Pi)} op_sel:[1,0] op_sel_hi:[1,0] neg_lo:[0,1]',
           f'v_cvt_pk_bf16_f32 v{ZP+T}, v{Sr}, v{Sr+2}',
           f'v_cvt_pk_bf16_f32 v{ZP+4+T}, v{Sr+1}, v{Sr+3}',
           f'v_cvt_pk_bf16_f32 v{ZP+8+T}, v{Si}, v{Si+2}',
           f'v_cvt_pk_bf16_f32 v{ZP+12+T}, v{Si+1}, v{Si+3}']
        return L
    for T in (0,2):
        L0,L1=bfly(T),bfly(T+1)
        wr=[f'ds_write_b64 v{5 if F else 7}, {P2(ZP+4*F+T)} offset:{2048*F+4*T}' for F in range(4)]
        if il:
            for k in range(0,14,2): A('\n'.join(L0[k:k+2]+L1[k:k+2]))
            for F in range(4): A('\n'.join([L0[14+F],L1[14+F],wr[F]]))
        else: A('\n'.join(L0+L1+wr))
    if p1: ST(2)
    A('s_waitcnt lgkmcnt(0)')
    if p1: ST(6)
    A('s_barrier')
    if p1: STW(7)
    ZR=40
    order=[('z',0),('b',0),('b',2),('z',1),('b',1),('b',3),('z',2),('z',3)]
    for k,i in order:
        A(f'ds_read_b128 v[{ZR+4*i}:{ZR+3+4*i}], v6 offset:{1024*i}' if k=='z' else f'ds_read_b128 v[{8+4*i}:{11+4*i}], v207 offset:{BPB+1024*i}')
    for t in range(2):
        for i in range(4):
            w_={(0,0):6,(0,1):5,(0,2):3,(0,3):2,(1,0):1,(1,2):0}.get((t,i))
            if w_ is not None: LG(w_)
            fr=[8,16,12,20][i]; d=56+8*t+4*(i&1); zz=ZR+8*t+4*(i>>1)
            A(f'v_mfma_f32_16x16x32_bf16 v[{d}:{d+3}], v[{zz}:{zz+3}], v[{fr}:{fr+3}], '+(f'v[{d}:{d+3}]' if i>=2 else '0'))
    for t in range(2):
        for r in (1,0,3,2): A(f'v_cvt_pk_bf16_f32 v{32+4*t+r}, v{56+8*t+2*r}, v{57+8*t+2*r}')
        A(f'''v_bfi_b32 v{33+4*t}, v205, s30, v{33+4*t}
v_bfi_b32 v{35+4*t}, v205, s31, v{35+4*t}
ds_write_b128 v208, v[{32+4*t}:{35+4*t}] offset:{2048*t}
ds_read_b128 v[{24+4*t}:{27+4*t}], v210 offset:{2048*t}''')
    for t in range(2): A(f's_waitcnt lgkmcnt({2-2*t})\nbuffer_store_dwordx4 v[{24+4*t}:{27+4*t}], v204, s[20:23], s{48+t} offen sc1')
    ST(4)
    A('s_setprio 0')
    calls(mA,mB,0)
    def kissue(tag):
        A(f'''v_lshlrev_b32 v7, 7, v0
s_cmp_lg_u32 s24, 7
s_cbranch_scc1 L_ki{tag}
s_lshl_b32 s59, s25, 13
s_add_u32 s59, s59, {KEY if one else KEY2}
buffer_load_dwordx4 v[84:87], v7, s[20:23], s59 offen sc1
L_ki{tag}:''')
    def kcheck(n):
        A(f'''s_mov_b32 s38, 0
s_waitcnt vmcnt({n})
L_gp:
v_cmp_ne_u64 vcc, s[30:31], v[86:87]
s_and_b64 exec, exec, vcc
s_cbranch_scc0 L_gy
buffer_load_dwordx4 v[84:87], v7, s[20:23], s59 offen sc1
s_add_u32 s38, s38, 1
s_cmp_lt_u32 s38, {SPIN}
s_waitcnt vmcnt(0)
s_cbranch_scc1 L_gp
L_gy:
s_mov_b64 exec, -1''')
        if dl:
            A('s_cmp_eq_u32 s38, 0\ns_cbranch_scc1 L_gz')
            for i in range(dl): A('buffer_load_dword v169, off, s[20:23], s59 sc1\ns_waitcnt vmcnt(0)')
            A('L_gz:')
    XV=96; GV=112; TV=128
    Q=lambda x: f'v[{x}:{x+1}]'
    def hdma(t):
        for b in range(4): A(f'buffer_load_dwordx4 v231, s[20:23], s{84+t} offen offset:{1024*b} sc1 lds')
    def c0():
        for a in range(2): A(f'ds_read2_b32 v[{72+2*a}:{73+2*a}], v{219+a} offset0:0 offset1:32\nds_read_b128 v[{76+4*a}:{79+4*a}], v{221+a}')
        for sl in range(4): A(f'ds_read_b128 v[{8+4*sl}:{11+4*sl}], v231 offset:{F2B+1024*sl}')
        A('s_mov_b32 m0, s86\nv_mov_b32 v4, 0')
    def c1(): pass
    def c2():
        LG(0)
        for i in range(8): A(f'v_lshlrev_b32 v{XV+2*i}, 16, v{76+i}\nv_and_b32 v{XV+2*i+1}, 0xffff0000, v{76+i}')
        A(f's_mov_b32 s36, {NL2E}')
        for i in range(8): A(f'v_pk_fma_f32 {Q(GV+2*i)}, {Q(XV+2*i)}, {Q(72+2*(i>>2))}, {Q(72+2*(i>>2))} op_sel:[0,0,1] op_sel_hi:[1,0,1] neg_lo:[0,0,1] neg_hi:[0,0,1]')
        for i in range(8): A(f'v_pk_mul_f32 {Q(TV+2*i)}, {Q(GV+2*i)}, s[36:37] op_sel_hi:[1,0]')
    def c3():
        for i in range(16): A(f'v_exp_f32 v{TV+i}, v{TV+i}')
        A(f's_mov_b32 s36, {hx(1/16)}')
        for i in range(8): A(f'v_pk_fma_f32 {Q(TV+2*i)}, {Q(TV+2*i)}, s[36:37], s[36:37] op_sel_hi:[1,0,0]')
    def c4():
        for i in range(16): A(f'v_rcp_f32 v{TV+i}, v{TV+i}')
        if not wrm: gmul()
    def gmul():
        for i in range(8): A(f'v_pk_mul_f32 {Q(GV+2*i)}, {Q(GV+2*i)}, {Q(TV+2*i)}')
    def gatego():
        if ack: A('s_waitcnt vmcnt(0)')
        ST(5)
        A('s_barrier')
        if pg: ST(1)
        hdma(0)
    MV=152
    def mld():
        for b in range(4): A(f'buffer_load_dwordx4 v[{MV+4*b}:{MV+3+4*b}], v6, s[20:23], s41 offen offset:{1024*b} sc1')
    def mgo():
        if two: mld()
        else: A('s_mov_b32 m0, s87'); hdma(1)
    def grp(tag,m,st,f):
        if m and st: f()
        elif m or st:
            A(f's_cmp_lt_u32 s24, 4\ns_cbranch_scc{0 if m else 1} L_{tag}'); f(); A(f'L_{tag}:')
    A('L_prep:')
    if cut=='P': A('s_endpgm')
    if ki==-1: kissue('a')
    for i,f in enumerate([c0,c1,c2,c3,c4]):
        f()
        if ki==i: kissue('a')
        if gate and kc==i:
            A('s_cmp_lg_u32 s24, 7\ns_cbranch_scc1 L_gx'); kcheck(0); A('L_gx:')
        grp(f'g{i}',gM==i,gS==i,gatego)
        grp(f'm{i}',mM==i,mS==i,mgo)
        if ix==i:
            A('s_cmp_lg_u32 s24, 7\ns_cbranch_scc1 L_noidx')
            if not gate: kcheck(8)
            wavemax(85,85,52)
            A('s_and_b32 s52, s52, 0x7ff\nv_mov_b32 v84, s52\nv_mov_b32 v232, 0\nL_noidx:')
    A('s_mov_b32 s33, 0')
    if hst: A('s_waitcnt vmcnt(0)')
    if not p1: STW(6)
    HR=24
    def ycv(t):
        a=56+4*t
        A(f'v_cvt_pk_f16_f32 v{a}, v{a}, v{a+1}\nv_cvt_pk_f16_f32 v{a+1}, v{a+2}, v{a+3}')
    def ywr(t):
        a=56+4*t
        A(f's_not_b64 exec, s[88:89]')
        for (ad,o) in ((227+t,0),(228-t,32)): A(f'ds_write2st64_b32 v{ad}, v{a}, v{a+1} offset0:{o} offset1:{o+4}')
        A('s_mov_b64 exec, -1')
    def tile(t):
        a=56+4*t
        A(f'L_hchk{t}:')
        if pg: A(f's_waitcnt vmcnt({4 if t==0 else 0})'); STW(2 if t==0 else 5)
        def mm(b):
            A(f'''v_mfma_f32_16x16x32_bf16 v[{a}:{a+3}], v[{8+4*b}:{11+4*b}], v[{HR+4*b}:{HR+3+4*b}], {f'v[{a}:{a+3}]' if b else '0'}
v_bitop3_b32 v68, v{HR+4*b}, v{HR+1+4*b}, v225 bitop3:0x7e
v_bitop3_b32 v71, v{HR+2+4*b}, v{HR+3+4*b}, v225 bitop3:0x7e''')
            A(f'v_or3_b32 v69, v68, v71, v69' if b else f'v_or_b32 v69, v68, v71')
        for b in range(4):
            A(f's_waitcnt vmcnt({(7 if t==0 else 3)-b})')
            for hf in range(2): A(f'ds_read_b64_tr_b16 v[{HR+4*b+2*hf}:{HR+1+4*b+2*hf}], v226 offset:{4096*t+1024*b+512*hf}')
            if b>=2: LG(4); mm(b-2)
        if t==1:
            if wb4: A('s_cmp_lg_u32 s33, s61\ns_cbranch_scc1 L_nb4\ns_barrier\nL_nb4:')
            ywr(0)
            A(f'ds_write_b32 v232, v84 offset:{IDXL}')
        for b in range(2,4):
            LG(6-2*b+3*t); mm(b)
        A(f'''v_cmp_ne_u32 vcc, 0, v69
s_and_b64 vcc, vcc, s[88:89]
s_cbranch_scc1 L_hretry{t}
L_hok{t}:''')
    tile(0); ycv(0)
    if wb4: A('s_mov_b32 s61, s33')
    tile(1)
    if not p1: ST(7)
    ycv(1); ywr(1)
    A('s_waitcnt lgkmcnt(0)\ns_barrier')
    if pg: STW(3)
    A(f'ds_read_b32 v67, v4 offset:{IDXL}')
    A(f'ds_read_b128 v[{TV+16}:{TV+19}], v229\nds_read_b128 v[{TV+20}:{TV+23}], v230')
    if wrm: gmul()
    fm=lambda a,i: A(f'v_fma_mix_f32 v{XV+8*a+i}, v{TV+16+i}, v{GV+8*a+i}, v{XV+8*a+i} op_sel:[{a},0,0] op_sel_hi:[1,0,0]')
    LG(2)
    A('v_cmp_ne_u32 vcc, v67, v216\nv_cmp_ne_u32 s[48:49], v67, v217')
    LG(1)
    for i in range(4): fm(0,i)
    A('v_cndmask_b32 v223, v233, v223, vcc')
    LG(0)
    for a in range(2):
        for i in range(0 if a else 4,8): fm(a,i)
        if a: A('v_cndmask_b32 v224, v233, v224, s[48:49]')
        for i in range(4*a,4*a+4): A(f'v_cvt_pk_bf16_f32 v{76+i}, v{XV+2*i}, v{XV+2*i+1}')
        if cut!='S': A(f'buffer_store_dwordx4 v[{76+4*a}:{79+4*a}], v{223+a}, s[16:19], 0 offen {osc}')
    A('L_fin:')
    ST(8)
    if stamps: A('s_waitcnt vmcnt(0)'); ST(9); A('s_branch L_stamps')
    A('s_endpgm')
    for t in range(2):
        A(f'''L_hretry{t}:
s_add_u32 s33, s33, 1
s_cmp_gt_u32 s33, {SPIN}
s_cbranch_scc1 L_hok{t}
s_mov_b32 m0, s{86+t}''')
        if two and t: mld()
        else: hdma(t)
        A(f's_waitcnt vmcnt(0)\ns_branch L_hchk{t}')
    A(f'''L_other:
s_cmp_lt_u32 s2, 184
s_cbranch_scc1 L_ffn
s_cmp_ge_u32 s2, 256
s_cbranch_scc1 L_end
s_lshr_b32 s39, s2, 3
s_mul_i32 s40, s24, 9
s_add_u32 s39, s39, s40
s_sub_u32 s39, s39, 23
s_cmp_ge_u32 s24, {nH}
s_cselect_b32 s40, {16*nP+8*nQ}, 0
s_add_u32 s39, s39, s40
s_cmp_ge_u32 s39, {NJ}
s_cbranch_scc1 L_end
s_waitcnt lgkmcnt(0)''')
    pjob('h')
    if xpf:
        A(f'''s_add_u32 s44, s25, {xd}
s_and_b32 s44, s44, 7
s_sub_u32 s45, 16, s44
s_cmp_eq_u32 s44, 0
s_cselect_b32 s45, 8, s45
s_sub_u32 s45, s45, s44
s_lshr_b32 s46, s2, 3
s_sub_u32 s46, s46, 23
s_lshl2_add_u32 s46, s46, s24
s_mul_i32 s46, s46, 50
v_min_u32 v12, {xpf-1}, v0
v_add_u32 v12, s46, v12
v_min_u32 v12, 1791, v12
v_mul_u32_u24 v13, 9363, v12
v_lshrrev_b32 v13, 16, v13
v_mul_u32_u24 v14, 7, v13
v_sub_u32 v12, v12, v14
v_and_b32 v14, 1, v13
v_mul_u32_u24 v14, s45, v14
v_lshrrev_b32 v13, 1, v13
v_lshl_add_u32 v13, v13, 4, v14
v_add_u32 v13, s44, v13
v_mad_u32_u24 v12, v13, 7, v12
v_lshlrev_b32 v12, 7, v12
s_cmp_ge_u32 s24, 4
s_cbranch_scc1 L_nx
buffer_load_dword v10, v12, s[4:7], 0 offen
L_nx:
s_barrier''')
    pace(hpace,0x340000)
    if ho:
        nw=nH+-(-(NJ-9*nH-16*nP-8*nQ)//9)
        A(f'''s_mov_b32 s45, 0
L_h1:
s_cmp_lg_u32 s24, s45
s_cbranch_scc1 L_h2
global_load_dword v8, v11, s[40:41]
L_h2:
s_barrier
s_add_u32 s45, s45, 1
s_cmp_lt_u32 s45, {nw}
s_cbranch_scc1 L_h1''')
    else:
        A(f'''s_cmp_ge_u32 s24, {nH}
s_cbranch_scc1 L_h2
global_load_dword v8, v11, s[40:41]
s_barrier
s_branch L_h3
L_h2:
s_barrier
global_load_dword v8, v11, s[40:41]
L_h3:''')
    if stamps:
        ST(1); A('s_waitcnt vmcnt(0)'); ST(9); A('s_branch L_stamps')
    A('s_endpgm')
    A(f'''L_ffn:
s_bfe_u32 s26, s2, 0x30003
s_mul_i32 s29, s25, 7
s_add_u32 s29, s29, s26
v_and_b32 v1, 15, v0
v_lshrrev_b32 v2, 4, v0
v_lshrrev_b32 v3, 3, v0
v_and_b32 v4, 7, v0
s_cmp_eq_u32 s24, 7
s_cbranch_scc1 L_fpoll
v_lshrrev_b32 v5, 2, v0
v_and_b32 v8, 3, v0
v_mul_u32_u24 v10, 3584, v5
v_lshl_add_u32 v10, v8, 4, v10
s_mul_i32 s28, s24, 64*3584
s_lshl_b32 s35, s29, 6
s_add_u32 s28, s28, s35
v_add_u32 v10, s28, v10
v_mul_u32_u24 v14, 896, v3
v_lshl_add_u32 v14, v4, 4, v14
s_mul_i32 s28, s29, 32*896
s_lshl_b32 s36, s24, 7
s_add_u32 s28, s28, s36
v_add_u32 v14, s28, v14
s_lshl_b32 s34, s24, 13
s_add_u32 s34, s34, {GU}
s_lshl_b32 s37, s24, 12
s_add_u32 s37, s37, {DN}
s_waitcnt lgkmcnt(0)''')
    pace(fpace,0x300000)
    A('s_load_dwordx2 s[30:31], s[20:21], 0')
    ST(1)
    FR=32; DF=16
    sc=sched or [12]*12
    def fadr():
        A(f'''v_lshl_add_u32 v9, v5, 3, s36
v_lshrrev_b32 v6, 2, v1
v_lshlrev_b32 v11, 3, v8
v_lshl_add_u32 v12, v6, 6, v11
v_lshrrev_b32 v13, 1, v2
v_lshl_add_u32 v12, v13, 10, v12
v_and_b32 v13, 1, v2
v_lshl_add_u32 v12, v13, 5, v12
v_add_u32 v12, s34, v12
v_lshl_add_u32 v13, v6, 7, v11
v_lshl_add_u32 v13, v2, 5, v13
v_add_u32 v13, s37, v13
v_lshlrev_b32 v15, 2, v0
s_lshl_b32 s35, s24, 8
v_add_u32 v11, s35, v15
v_mov_b32 v96, 0
v_mov_b32 v108, 0x3f803f80
v_mov_b32 v109, 0x3f803f80
s_waitcnt lgkmcnt(0)''')
        nonce()
    def gutr():
        for a in range(16): A(f'ds_read_b64_tr_b16 v[{FR+2*a}:{FR+2*a+1}], v12 offset:{(a>>2)*2048+(a&3)*256}')
    for i in range(13):
        if i==kat: A(f's_waitcnt vmcnt({kw}) lgkmcnt(0)\ns_barrier')
        if i==fl:
            if gtr: fadr(); A('s_waitcnt vmcnt(0)'); gutr()
            A('s_barrier')
        if pwp and i==pwp-1:
            A(f'''s_lshl_b32 s27, s24, 3
v_add_u32 v7, s27, v3
v_mul_u32_u24 v7, 7168, v7
v_lshl_add_u32 v7, v4, 4, v7
s_lshl_b32 s40, s29, 7
s_add_u32 s40, s40, {PART}
s_waitcnt lgkmcnt(0)
v_mov_b32 v102, s30
v_mov_b32 v103, s31
buffer_store_dwordx4 v[100:103], v7, s[20:23], s40 offen sc1''')
        if i==12: break
        if sc[i]<=i: A(f's_waitcnt vmcnt({sc[i]-1})')
        if fst and i>=4: A(f's_memrealtime s[{64+2*(i-3)}:{65+2*(i-3)}]')
        if i<8:
            A(f's_add_u32 m0, s34, {1024*i}\nglobal_load_lds_dwordx4 v10, s[{10+2*(i&1)}:{11+2*(i&1)}]')
            if i&1 and i<7: A('v_add_u32 v10, 16*3584, v10')
        else:
            A(f's_add_u32 m0, s37, {1024*(i-8)}\nglobal_load_lds_dwordx4 v14, s[14:15]')
            if i<11: A(f'v_add_u32 v14, 8*896, v14')
    ST(2)
    if not gtr:
        fadr(); A('s_waitcnt vmcnt(4)')
        if kat==13: A('s_barrier')
        gutr()
    def dtr():
        for a in range(8): A(f'ds_read_b64_tr_b16 v[{DF+2*a}:{DF+2*a+1}], v13 offset:{512*a}')
    if not dlate:
        A('s_waitcnt vmcnt(0) lgkmcnt(0)')
        if kat==14: A('s_barrier')
        dtr()
    ST(3)
    A(f'''s_mov_b32 exec_lo, 0x11111111
s_mov_b32 exec_hi, 0x11111111
s_waitcnt lgkmcnt(0)
s_barrier
ds_read_b64 v[108:109], v9 offset:{XROW}
s_mov_b64 exec, -1
ds_read_b64 v[100:101], v96 offset:{INFO}''')
    ST(4)
    LGS(1)
    for a in range(16):
        A(f'v_mfma_f32_4x4x4_16b_bf16 v[64:67], v[108:109], v[{FR+2*a}:{FR+2*a+1}], '+('v[64:67]' if a else '0')+f' cbsz:4 abid:{a}')
    if dlate: A('s_waitcnt vmcnt(0) lgkmcnt(0)'); dtr()
    A(f'''s_waitcnt lgkmcnt({8 if dlate else 0})
v_fma_f32 v68, -v101, v65, v64
ds_write_b32 v11, v68 offset:{PB}''')
    if fw==0: A(f'v_mov_b32 v106, s30\nv_mov_b32 v107, s31\nv_mul_f32 v98, {NL2E}, v100\nv_mul_f32 v99, v100, v100')
    ST(5)
    A('s_waitcnt lgkmcnt(0)')
    A(f'''s_barrier
ds_read2st64_b32 v[70:71], v15 offset0:0 offset1:1
ds_read2st64_b32 v[72:73], v15 offset0:2 offset1:3
ds_read2st64_b32 v[74:75], v15 offset0:4 offset1:5
ds_read_b32 v76, v15 offset:1536
''')
    if fw==1: A(f'v_mov_b32 v106, s30\nv_mov_b32 v107, s31\nv_mul_f32 v98, {NL2E}, v100\nv_mul_f32 v99, v100, v100')
    A(f'''s_waitcnt lgkmcnt(2)
v_add_f32 v70, v70, v71
v_add_f32 v72, v72, v73
s_waitcnt lgkmcnt(0)
v_add_f32 v74, v74, v75
v_add_f32 v70, v70, v72
v_add_f32 v74, v74, v76
v_add_f32 v66, v70, v74
v_add_f32 v67, v70, v74
v_permlane32_swap_b32 v66, v67
v_mul_f32 v68, v98, v66
v_exp_f32 v68, v68
v_mul_f32 v67, v66, v67
v_add_f32 v68, 1.0, v68
v_rcp_f32 v68, v68
v_mul_f32 v67, v67, v99
v_mul_f32 v67, v67, v68
v_mov_b32_dpp v68, v67 quad_perm:[1,1,3,3] {DPP}
v_cvt_pk_bf16_f32 v70, v67, v68
v_mov_b32_dpp v71, v70 quad_perm:[2,2,2,2] {DPP}''')
    for a in range(8):
        A(f'v_mfma_f32_4x4x4_16b_bf16 v[76:79], v[70:71], v[{DF+2*a}:{DF+2*a+1}], '+('v[76:79]' if a else '0')+f' cbsz:4 abid:{a}')
    A(f'''v_mov_b32 v104, v76
buffer_store_dwordx4 v[104:107], v7, s[20:23], s40 offen sc1''')
    ST(6)
    if ad2: A('s_barrier')
    if pack: A('s_waitcnt vmcnt(0)')
    ST(7)
    A('s_barrier')
    ST(8)
    if stamps: ST(9); A('s_branch L_stamps')
    A('s_endpgm')
    A(f'''L_fpoll:
s_waitcnt lgkmcnt(0)
s_load_dwordx2 s[30:31], s[20:21], 0
v_lshlrev_b32 v5, 7, v0
s_lshl_b32 s36, s25, 13
s_add_u32 s36, s36, {KEY}
s_lshl_b32 s27, s29, 3
v_add_u32 v6, s27, v4
v_sub_u32 v7, 448, v6
v_min_u32 v7, v7, v6
v_sub_u32 v8, 224, v7
v_cmp_lt_u32 s[42:43], v8, v7
v_min_u32 v7, v7, v8
v_sub_u32 v8, 112, v7
v_cmp_lt_u32 vcc, v8, v7
v_min_u32 v7, v7, v8
v_mul_u32_u24 v8, 4682, v7
v_lshrrev_b32 v8, 16, v8
v_min_u32 v8, 3, v8
v_mul_u32_u24 v9, 14, v8
v_sub_u32 v9, v7, v9
v_addc_co_u32 v8, vcc, v8, v8, vcc
v_cmp_eq_u32 vcc, 6, v8
v_mov_b32 v7, 0xffff0000
v_cndmask_b32 v47, 0, 8, s[42:43]
v_cndmask_b32 v38, -1, v7, vcc
v_add_lshl_u32 v47, v47, v8, 12
v_lshl_add_u32 v47, v3, 6, v47
v_and_b32 v7, 1, v9
v_mul_u32_u24 v39, 0x020202, v7
v_lshl_add_u32 v39, v7, 25, v39
v_add_u32 v39, 0x05040100, v39
v_and_b32 v7, 12, v9
v_and_b32 v9, 2, v9
v_lshl_add_u32 v9, v7, 1, v9
v_lshl_add_u32 v9, v9, 1, v47
v_lshlrev_b32 v46, 4, v0
s_mov_b32 m0, {XROW}
s_mul_i32 s41, s29, 7168
s_add_u32 s41, s41, {PART}
s_add_u32 s40, s41, 4096
v_cvt_f32_u32 v13, v3
v_mov_b32 v42, 0
s_mov_b32 s33, 0
s_waitcnt lgkmcnt(0)''')
    nonce()
    A('v_mov_b32 v40, s30\nv_mov_b32 v41, s31\ns_setprio 3\ns_barrier')
    ST(1)
    A(f'''L_kpoll:
buffer_load_dwordx4 v[16:19], v5, s[20:23], s36 offen sc1
s_add_u32 s33, s33, 1
s_cmp_gt_u32 s33, {SPIN}
s_cbranch_scc1 L_kpollx
s_waitcnt vmcnt(0)
v_cmp_ne_u64 vcc, s[30:31], v[18:19]
s_and_b64 exec, exec, vcc
{'' if spec else 's_cbranch_scc1 L_kpoll'}
L_kpollx:
s_mov_b32 s54, s33
s_mov_b64 exec, -1''')
    ST(2)
    wavemax(33,17)
    A(f'''s_and_b32 s48, s46, 0x7ff
s_mul_i32 s49, s48, 896
buffer_load_dwordx4 v46, s[4:7], s49 offen lds
{'s_barrier' if fl<=12 else ''}
v_cmp_eq_u32 vcc, s46, v17
s_ff1_i32_b64 s47, vcc
v_readlane_b32 s47, v16, s47
s_and_b32 s50, s47, 0xffff0000
s_lshl_b32 s51, s47, 16
v_rcp_f32 v36, s50
v_lshl_add_u32 v10, v6, 1, s49
v_mov_b32 v37, s51
ds_write_b64 v42, v[36:37] offset:{INFO}
s_sub_u32 s52, 0x800, s48
s_and_b32 s52, s52, 0x7ff
s_cmp_lt_u32 s29, 28
s_cselect_b32 s52, s48, s52
s_lshr_b32 s53, s52, 4
s_and_b32 s52, s52, 15
s_lshl_b32 s52, s52, 16
s_add_u32 s52, s52, {HB}
v_cvt_f32_u32 v12, s53
v_mul_f32 v12, {hx(1/128)}, v12
v_mul_f32 v13, v13, v12
v_mul_f32 v12, {hx(8.0)}, v12
s_bitcmp1_b32 s53, 0
s_cselect_b32 s53, -1.0, 1.0
v_mov_b32 v14, s53
v_cmp_eq_u32 vcc, 0, v3
s_waitcnt vmcnt(0) lgkmcnt(0)''')
    ST(3)
    A(f'''s_barrier
s_setprio 0
v_lshlrev_b32 v11, 1, v6
ds_read_u16 v11, v11 offset:{XROW}
s_andn2_b32 s46, s46, 0x7ff
s_ashr_i32 s47, s46, 31
s_not_b32 s47, s47
s_or_b32 s47, s47, 0x80000000
s_xor_b32 s46, s46, s47
v_mov_b32 v15, s46
v_mul_f32 v15, {NL2E}, v15
v_exp_f32 v15, v15
v_add_f32 v15, 1.0, v15
v_rcp_f32 v15, v15
s_mov_b32 s33, 0
s_waitcnt lgkmcnt(0)''')
    if pwo: A(f's_mov_b64 exec, 0xff\nbuffer_store_short v11, v10, s[16:19], 0 offen {fsc}\ns_mov_b64 exec, -1')
    A(f'''v_lshlrev_b32 v11, 16, v11
v_sub_f32 v45, v11, v37
v_mul_f32 v45, v45, v36
{'' if hat else 's_barrier'}''')
    ST(4)
    def hl(tag):
        for i in range(8):
            if tag: A(f'buffer_load_dwordx3 v[{64+4*i}:{66+4*i}], v47, s[20:23], s52 offen offset:{512*i+52} sc1')
            else: A(f'buffer_load_dwordx3 v[{96+4*i}:{98+4*i}], v9, s[20:23], s52 offen offset:{512*i} sc1')
    A(f'''s_cmp_lg_u32 s29, 0
s_cbranch_scc1 L_noa0
v_lshlrev_b32 v34, 6, v0
s_add_u32 s35, s52, 16384
buffer_load_dwordx3 v[28:30], v34, s[20:23], s35 offen offset:52 sc1
L_noa0:''')
    hl(1); hl(0)
    if hat: A('s_barrier')
    for i in range(8):
        A('v_cos_f32 v16, v13\nv_sin_f32 v17, v13')
        if i<7: A('v_add_f32 v13, v13, v12')
        if i==0: A('v_cndmask_b32 v17, v17, v14, vcc')
        A(f'v_cvt_pk_bf16_f32 v{48+i}, v16, v17')
    A('L_hpoll:\ns_waitcnt vmcnt(8)')
    for i in range(0,8,2):
        A(f'v_bitop3_b32 v{20+i}, v{64+4*i}, v{68+4*i}, v40 bitop3:0x7e\nv_bitop3_b32 v{21+i}, v{66+4*i}, v{70+4*i}, v41 bitop3:0x7e')
    A(f'''v_or3_b32 v20, v20, v22, v24
v_or3_b32 v21, v21, v23, v25
v_or3_b32 v20, v20, v26, v27
v_or_b32 v20, v20, v21
v_and_b32 v20, v20, v38
v_cmp_ne_u32 vcc, 0, v20
s_cbranch_vccz L_hpollx
s_add_u32 s33, s33, 1
s_cmp_gt_u32 s33, {SPIN}
s_cbranch_scc1 L_hpollx''')
    hl(1); hl(0)
    A('s_branch L_hpoll\nL_hpollx:')
    ST(5)
    A(f'''v_mov_b32 v44, 0
s_waitcnt vmcnt(0)''')
    ST(6)
    for i in range(8): A(f'v_perm_b32 v{56+i}, v{98+4*i}, v{96+4*i}, v39')
    for i in range(8): A(f'v_dot2c_f32_bf16 v44, v{48+i}, v{56+i}')
    A(f'''v_add_f32_dpp v44, v44, v44 row_ror:8 {DPP}
v_mov_b32 v43, v44
v_permlane16_swap_b32 v44, v43
v_add_f32 v16, v44, v43
v_add_f32 v17, v44, v43
v_permlane32_swap_b32 v16, v17
v_add_f32 v44, v16, v17
s_mov_b32 s33, 0
s_barrier
{'s_endpgm' if cut=='F' else ''}''')
    def pl():
        for i in range(7): A(f'buffer_load_dwordx4 v[{64+4*i}:{67+4*i}], v46, s[20:23], s{41 if i<4 else 40} offen offset:{1024*(i&3)} sc1')
    if ad2:
        A(f's_cmp_gt_u32 s54, {ad2}\ns_cbranch_scc1 L_pe0'); pl(); A('s_barrier\ns_branch L_pe1\nL_pe0:\ns_barrier')
    A('L_ppoll:'); pl(); A('L_pe1:')
    A(f'''s_add_u32 s33, s33, 1
s_cmp_gt_u32 s33, {SPIN}
s_cbranch_scc1 L_ppollx
s_waitcnt vmcnt(5)
v_bitop3_b32 v20, v66, v70, v40 bitop3:0x7e
v_bitop3_b32 v21, v67, v71, v41 bitop3:0x7e
v_add_f32 v16, v64, v68
s_waitcnt vmcnt(3)
v_bitop3_b32 v22, v74, v78, v40 bitop3:0x7e
v_bitop3_b32 v23, v75, v79, v41 bitop3:0x7e
v_add_f32 v17, v72, v76
v_or3_b32 v20, v20, v21, v22
s_waitcnt vmcnt(1)
v_bitop3_b32 v21, v82, v86, v40 bitop3:0x7e
v_bitop3_b32 v22, v83, v87, v41 bitop3:0x7e
v_add_f32 v18, v80, v84
v_add_f32 v16, v16, v17
v_or3_b32 v20, v20, v21, v22
v_add_f32 v16, v16, v18
v_or_b32 v20, v20, v23
s_waitcnt vmcnt(0)
v_add_f32 v16, v16, v88
v_cmp_ne_u32 s[42:43], 0, v20
v_cmp_ne_u64 vcc, s[30:31], v[90:91]
v_add_f32_dpp v16, v16, v16 row_ror:8 {DPP}
v_mov_b32 v17, v16
s_or_b64 vcc, vcc, s[42:43]
s_cbranch_scc1 L_ppoll
L_ppollx:''')
    ST(7)
    A(f'''v_permlane16_swap_b32 v16, v17
v_add_f32 v18, v16, v17
v_add_f32 v19, v16, v17
v_permlane32_swap_b32 v18, v19
v_add_f32 v16, v18, v19
v_fmac_f32 v45, v16, v15
v_mul_f32 v16, {NL2E}, v45
v_exp_f32 v16, v16
v_mul_f32 v45, v45, v44
v_add_f32 v16, 1.0, v16
v_rcp_f32 v16, v16
s_mov_b64 exec, 0xff
v_fmac_f32 v11, v45, v16
v_cvt_pk_bf16_f32 v11, v11, v11
buffer_store_short v11, v10, s[16:19], 0 offen {fsc}
s_cmp_lg_u32 s29, 0
s_cbranch_scc1 L_noctl
s_mov_b64 exec, -1
s_mov_b32 s34, 0
v_lshlrev_b32 v34, 6, v0
L_apoll:
v_mov_b32 v29, v30
v_cmp_ne_u64 vcc, s[30:31], v[28:29]
s_cbranch_vccz L_aok
buffer_load_dwordx3 v[28:30], v34, s[20:23], s35 offen offset:52 sc1
s_add_u32 s34, s34, 1
s_cmp_lt_u32 s34, {SPIN}
s_waitcnt vmcnt(0)
s_cbranch_scc1 L_apoll
L_aok:
s_mov_b64 exec, 1
buffer_store_dwordx2 v[40:41], off, s[20:23], 0 {fsc}
L_noctl:''')
    ST(8)
    if stamps:
        A('s_waitcnt vmcnt(0)'); ST(9)
        A(f'''L_stamps:
s_waitcnt lgkmcnt(0)
s_mov_b64 exec, 1
s_lshl3_add_u32 s3, s2, s24
s_lshl_b32 s3, s3, 6
s_add_u32 s3, s3, {STAMPS}''')
        for i in range(10): A(f'v_mov_b32 v{4+i}, s{64+2*i}')
        A('v_mov_b32 v14, s33\ns_getreg_b32 s40, hwreg(HW_REG_HW_ID)\ns_getreg_b32 s41, hwreg(HW_REG_XCC_ID)\ns_and_b32 s40, s40, 0xffff\ns_lshl_b32 s41, s41, 16\ns_or_b32 s40, s40, s41\nv_mov_b32 v15, s40')
        A('buffer_store_dwordx4 v[4:7], off, s[20:23], s3\nbuffer_store_dwordx4 v[8:11], off, s[20:23], s3 offset:16\nbuffer_store_dwordx4 v[12:15], off, s[20:23], s3 offset:32')
    A('L_end:\ns_endpgm')
    A('.fill 1024, 4, 0xbf810000')
    A(f'''.section .rodata,"a"
.p2align 6
.amdhsa_kernel {NAME}
.amdhsa_next_free_vgpr 256
.amdhsa_next_free_sgpr 100
.amdhsa_accum_offset 256
.amdhsa_group_segment_fixed_size 0
.amdhsa_kernarg_size 104
.amdhsa_user_sgpr_count 2
.amdhsa_user_sgpr_kernarg_segment_ptr 1
.amdhsa_system_sgpr_workgroup_id_x 1
.end_amdhsa_kernel''')
    return HEADER+f'; @launch grid=(256,1,1) block=(512,1,1) lds={LDS}\n'+(align_runs(A.text(),aln) if aln else A.text())
if __name__=='__main__':
    open('k15.s','w').write(gen(False))
    open('k15_st.s','w').write(gen(True))
```

```python
import sys,re
from asmlib import Ins, need
L=[l.split(';')[0].strip() for l in open(sys.argv[1]).read().split('\n')]
ins=[];lab={}
for t in L:
    if not t or t.startswith('.'): continue
    if t.endswith(':'): lab[t[:-1]]=len(ins); continue
    ins.append(Ins(t.replace('_e64','')))
calls=[i for i,x in enumerate(ins) if x.op=='s_call_b64']
def succ(i):
    x=ins[i]
    if x.op=='s_endpgm': return []
    if x.op=='s_branch': return [lab[x.ops[0]]]
    if x.op=='s_call_b64': return [lab[x.ops[1]]]
    if x.op=='s_setpc_b64': return [c+1 for c in calls]
    if x.op.startswith('s_cbranch'): return [i+1,lab[x.ops[0]]]
    return [i+1] if i+1<len(ins) else []
bad=0
for i,p in enumerate(ins):
    st=[(j,0) for j in succ(i)]; seen=set()
    while st:
        j,d=st.pop()
        if (j,d) in seen or d>=13: continue
        seen.add((j,d))
        n=need(p,ins[j])
        if n>d: print('HAZARD',n,d,'|',p.text,'->',ins[j].text); bad+=1
        for k in succ(j): st.append((k,d+ins[j].states))
print('instructions',len(ins),'hazards',bad)
```
